```python
import torch

def _softmax(x, axis=-1):
    return torch.softmax(x, dim=axis)
def _gelu(x):
    return torch.nn.functional.gelu(x, approximate="tanh")
def _silu(x):
    return torch.nn.functional.silu(x)
def _sigmoid(x):
    return torch.sigmoid(x)
def _layernorm(x, axis=-1, eps=1e-5):
    m = x.mean(dim=axis, keepdim=True)
    v = x.var(dim=axis, keepdim=True, unbiased=False)
    return (x - m) / torch.sqrt(v + eps)
def _scatter_add(tgt, idx, src, axis=0):
    return tgt.clone().index_add_(axis, idx, src)
def _segment_sum(src, seg, n):
    out = torch.zeros((n,) + src.shape[1:], dtype=src.dtype)
    return out.index_add_(0, seg, src)
def _pad(x, pw):
    flat = tuple(v for pair in reversed(pw) for v in pair)
    return torch.nn.functional.pad(x, flat)

kernel_name = 'parallel_sum__linear_kernel_hedgehog__glu_gated_geglu__prompt'

def setup_inputs():

    _w = (lambda a: (lambda t: t.to(torch.bfloat16) if t.is_floating_point() else t)(torch.as_tensor(a)))
    def _A_setup():
        B, S, D, H = 1, 2048, 640, 32
        Dh = D // H
        return {
            "x": _w((lambda *s: torch.randn(*s, dtype=torch.bfloat16) * 0.05)(B, S, D)),
            "wqkv": _w((lambda *s: torch.randn(*s, dtype=torch.bfloat16) * 0.2)(D, 3 * D)),
            "w_phi": _w((lambda *s: torch.randn(*s, dtype=torch.bfloat16) * 0.2)(H, Dh, Dh) * (Dh ** -0.5)),
            "wo": _w((lambda *s: torch.randn(*s, dtype=torch.bfloat16) * 0.05)(D, D)),
        }
    _A_in = _A_setup()

    def _B_setup():
        B, S, Dm, Df = 1, 2048, 640, 1536
        return {
            "x": _w((lambda *s: torch.randn(*s, dtype=torch.bfloat16) * 0.05)(B, S, Dm)),
            "w_gate": _w((lambda *s: torch.randn(*s, dtype=torch.bfloat16) * 0.4)(Dm, Df) * (Dm ** -0.5)),
            "w_up": _w((lambda *s: torch.randn(*s, dtype=torch.bfloat16) * 0.4)(Dm, Df) * (Dm ** -0.5)),
            "w_down": _w((lambda *s: torch.randn(*s, dtype=torch.bfloat16) * 0.4)(Df, Dm) * (Df ** -0.5)),
        }
    _B_in = _B_setup()

    return {
        "A_x": _A_in["x"],
        "A_wqkv": _A_in["wqkv"],
        "A_w_phi": _A_in["w_phi"],
        "A_wo": _A_in["wo"],
        "B_x": _B_in["x"],
        "B_w_gate": _B_in["w_gate"],
        "B_w_up": _B_in["w_up"],
        "B_w_down": _B_in["w_down"],
    }

def reference(A_x, A_wqkv, A_w_phi, A_wo, B_x, B_w_gate, B_w_up, B_w_down):
    def _A_ref(x, wqkv, w_phi, wo):
        B, S, D = x.shape
        H = 32; Dh = D // H
        qkv = (lambda x, *d: x.permute(*d))((x @ wqkv).reshape(B, S, 3, H, Dh), 2, 0, 3, 1, 4)
        q, k, v = qkv[0], qkv[1], qkv[2]
        pq = torch.einsum("bhsd,hdf->bhsf", q, w_phi)
        pk = torch.einsum("bhsd,hdf->bhsf", k, w_phi)
        phi_q = torch.concatenate([_softmax(pq, axis=-1), _softmax(-pq, axis=-1)], axis=-1)
        phi_k = torch.concatenate([_softmax(pk, axis=-1), _softmax(-pk, axis=-1)], axis=-1)
        kv = torch.einsum("bhsf,bhsd->bhfd", phi_k, v)
        z  = torch.einsum("bhsf->bhf", phi_k)
        num = torch.einsum("bhqf,bhfd->bhqd", phi_q, kv)
        den = torch.einsum("bhqf,bhf->bhq", phi_q, z)[..., None] + 1e-6
        o = num / den
        return (lambda x, *d: x.permute(*d))(o, 0, 2, 1, 3).reshape(B, S, D) @ wo

    def _B_ref(x, w_gate, w_up, w_down):
        g = torch.einsum("bsd,df->bsf", x, w_gate)
        u = torch.einsum("bsd,df->bsf", x, w_up)
        h = _gelu(g) * u
        return torch.einsum("bsf,fd->bsd", h, w_down)

    x = A_x
    xn = _layernorm(x, axis=-1)
    return x + _A_ref(xn, A_wqkv, A_w_phi, A_wo) + _B_ref(xn, B_w_gate, B_w_up, B_w_down)
```

```python
import re

TRANS = ("v_exp_f32", "v_log_f32", "v_rcp_f32", "v_rsq_f32", "v_sqrt_f32", "v_sin_f32", "v_cos_f32")
_REG = re.compile(r"^(-?)(abs\()?([vas])(\d+|\[(\d+):(\d+)\])\)?$")


def regs_of(tok):
    tok = tok.strip()
    if tok in ("vcc", "exec", "m0", "scc"):
        return {(tok, 0)}
    if tok in ("vcc_lo", "vcc_hi"):
        return {("vcc", 0)}
    m = _REG.match(tok)
    if not m:
        return set()
    k = m.group(3)
    if m.group(5) is not None:
        return {(k, i) for i in range(int(m.group(5)), int(m.group(6)) + 1)}
    return {(k, int(m.group(4)))}


class Ins:
    __slots__ = ("kind", "mn", "w", "r", "a", "b", "c", "states", "passes")

    def __init__(self):
        self.kind = ""
        self.mn = ""
        self.w = set()
        self.r = set()
        self.a = set()
        self.b = set()
        self.c = set()
        self.states = 1
        self.passes = 0


def parse(text):
    t = text.split(";")[0].strip()
    t = re.sub(r"\s\w+:\[[^\]]*\]", "", t)
    sp = t.split(None, 1)
    mn = sp[0]
    ops = []
    mods = []
    if len(sp) > 1:
        parts = [p.strip() for p in sp[1].split(",")]
        for i, p in enumerate(parts):
            toks = p.split()
            if not toks:
                continue
            ops.append(toks[0])
            mods += toks[1:]
    I = Ins()
    I.mn = mn
    R = [regs_of(o) for o in ops]
    if mn.startswith("v_mfma"):
        I.kind = "mfma"
        I.w = R[0]
        I.a, I.b, I.c = R[1], R[2], R[3]
        I.r = R[1] | R[2] | R[3]
        I.passes = 8 if "32x32" in mn else 4
    elif mn.startswith("v_"):
        I.kind = "valu"
        if mn.startswith("v_cmp"):
            I.w = R[0]
            I.r = set().union(*R[1:])
        elif "permlane" in mn and "swap" in mn:
            I.w = R[0] | R[1]
            I.r = R[0] | R[1]
        elif mn.startswith(("v_dot2c", "v_fmac", "v_pk_fmac")):
            I.w = R[0]
            I.r = set().union(*R)
        elif mn.startswith(("v_add_co", "v_sub_co", "v_addc_co", "v_subb_co")):
            I.w = R[0] | R[1]
            I.r = set().union(*R[2:])
        else:
            I.w = R[0]
            I.r = set().union(*R[1:]) if len(R) > 1 else set()
        if mn.startswith("v_cndmask") and len(ops) == 3:
            I.r |= {("vcc", 0)}
    elif mn.startswith("ds_"):
        I.kind = "ds"
        if mn.startswith(("ds_read", "ds_bpermute", "ds_permute", "ds_swizzle")):
            I.w = R[0]
            I.r = set().union(*R[1:])
        else:
            I.r = set().union(*R)
    elif mn.startswith(("buffer_", "global_")):
        I.kind = "vmem"
        if mn in ("buffer_wbl2", "buffer_inv"):
            pass
        elif "lds" in mods:
            I.r = set().union(*R) | {("m0", 0)}
            I.kind = "vmem"
            I.mn = mn + "_LDS"
        elif "load" in mn:
            I.w = R[0]
            I.r = set().union(*R[1:])
        elif "atomic" in mn and "sc0" in mods:
            I.w = R[0]
            I.r = set().union(*R)
        else:
            I.r = set().union(*R)
    elif mn.startswith("s_"):
        I.kind = "salu"
        if mn == "s_nop":
            I.states = int(ops[0], 0) + 1
        elif mn.startswith(("s_cmp", "s_waitcnt", "s_barrier", "s_branch", "s_cbranch", "s_endpgm",
                            "s_setprio", "s_sleep")):
            I.r = set().union(*R) if R else set()
        elif mn.startswith("s_load"):
            I.kind = "smem"
            I.w = R[0]
            I.r = set().union(*R[1:])
        else:
            I.w = R[0] if R else set()
            I.r = set().union(*R[1:]) if len(R) > 1 else set()
            if "saveexec" in mn:
                I.w = I.w | {("exec", 0)}
    else:
        raise ValueError("unknown instruction: " + text)
    return I


def _is_sreg(x):
    return x[0] in ("s", "vcc")


class Asm:
    def __init__(self):
        self.lines = []
        self.hist = []
        self.lg = []
        self.vm = []
        self.auto = True

    def raw(self, s):
        self.lines.append(s)

    def comment(self, s):
        self.lines.append("    ; " + s)

    def label(self, name):
        self.lines.append(name + ":")

    def flush_hist(self):
        self.lines.append("    s_nop 7")
        self.lines.append("    s_nop 7")
        self.hist = []

    def _need(self, I):
        need = 0
        dist = 0
        for P in reversed(self.hist):
            req = 0
            if P.kind == "valu":
                pw_v = {x for x in P.w if x[0] in ("v", "a")}
                pw_s = {x for x in P.w if _is_sreg(x)}
                if I.kind == "mfma" and (pw_v & I.r):
                    req = max(req, 2)
                if I.kind == "valu":
                    if pw_s & I.r:
                        req = max(req, 4 if I.mn.startswith(("v_readlane", "v_writelane")) else 2)
                    if (pw_v & I.r) and I.mn.startswith(("v_readfirstlane", "v_readlane")):
                        req = max(req, 1)
                    if (pw_v & I.r) and ("permlane" in I.mn or "dpp" in I.mn):
                        req = max(req, 2)
                    if P.mn.startswith(TRANS) and (pw_v & I.r) and not I.mn.startswith(TRANS):
                        req = max(req, 1)
                    if P.mn.startswith("v_dot2") and (pw_v & (I.r | I.w)):
                        same = I.mn == P.mn
                        if not same:
                            req = max(req, 3)
                if I.kind == "vmem" and (pw_s & I.r):
                    req = max(req, 5)
                if P.mn.startswith("v_dot2") and I.kind in ("mfma", "vmem", "ds") and (pw_v & (I.r | I.w)):
                    req = max(req, 3)
            elif P.kind == "mfma":
                big = {4: 8, 8: 12}[P.passes]
                mid = {4: 6, 8: 10}[P.passes]
                war = {4: 3, 8: 7}[P.passes]
                if I.kind == "mfma":
                    if P.w & (I.a | I.b):
                        req = max(req, big)
                    if P.w & I.c:
                        if not (P.w == I.c and P.passes == I.passes):
                            req = max(req, mid)
                    elif P.w & I.w:
                        req = max(req, big)
                else:
                    if P.w & (I.r | I.w):
                        req = max(req, big)
                    if I.kind == "valu" and (P.c & I.w):
                        req = max(req, war)
            elif P.kind == "salu":
                if ("m0", 0) in P.w and I.kind == "vmem" and ("m0", 0) in I.r:
                    req = max(req, 1)
            elif P.kind == "vmem":
                if ("store_dwordx4" in P.mn or "store_dwordx3" in P.mn) and (P.r & I.w) and I.kind in ("valu", "mfma"):
                    req = max(req, 2)
            if req > dist:
                need = max(need, req - dist)
            dist += P.states
            if dist > 24:
                break
        return need

    def _waits(self, I):
        touched = I.r | I.w
        pos = -1
        for i, d in enumerate(self.lg):
            if d & touched:
                pos = i
        wl = None
        if pos >= 0:
            wl = len(self.lg) - pos - 1
            self.lg = self.lg[pos + 1:]
        pos = -1
        for i, d in enumerate(self.vm):
            if d & touched:
                pos = i
        wv = None
        if pos >= 0:
            wv = len(self.vm) - pos - 1
            self.vm = self.vm[pos + 1:]
        if wl is not None or wv is not None:
            s = "s_waitcnt"
            if wv is not None:
                s += " vmcnt(%d)" % min(wv, 63)
            if wl is not None:
                s += " lgkmcnt(%d)" % min(wl, 15)
            self._emit(s)

    def _emit(self, text):
        I = parse(text)
        n = self._need(I)
        while n > 0:
            k = min(n, 16)
            self.lines.append("    s_nop %d" % (k - 1))
            J = Ins()
            J.kind = "salu"
            J.mn = "s_nop"
            J.states = k
            self.hist.append(J)
            n -= k
        self.lines.append("    " + text)
        self.hist.append(I)
        if len(self.hist) > 40:
            self.hist = self.hist[-40:]
        return I

    def I(self, text):
        I = parse(text)
        if I.mn == "s_waitcnt":
            m = re.search(r"vmcnt\((\d+)\)", text)
            if m:
                n = int(m.group(1))
                if len(self.vm) > n:
                    self.vm = self.vm[len(self.vm) - n:] if n else []
            m = re.search(r"lgkmcnt\((\d+)\)", text)
            if m:
                n = int(m.group(1))
                if len(self.lg) > n:
                    self.lg = self.lg[len(self.lg) - n:] if n else []
            self._emit(text)
            return
        if self.auto:
            self._waits(I)
        self._emit(text)
        if I.kind == "ds":
            self.lg.append(set(I.w))
            assert len(self.lg) <= 64
        elif I.kind == "vmem":
            self.vm.append(set(I.w))

    def __call__(self, text):
        for ln in text.strip().split("\n"):
            ln = ln.strip()
            if ln and not ln.startswith(";"):
                self.I(ln)

    def text(self):
        return "\n".join(self.lines) + "\n"


def vr(a, n=1):
    return "v%d" % a if n == 1 else "v[%d:%d]" % (a, a + n - 1)


def sr(a, n=1):
    return "s%d" % a if n == 1 else "s[%d:%d]" % (a, a + n - 1)
```

```python
import sys, os
sys.path.insert(0, os.path.dirname(os.path.abspath(__file__)))
from asmdsl import Asm, vr, sr

NAME = "parallel_sum__linear_kernel_hedgehog__glu_gated_geglu__prompt"

WS_H = 0
WS_PHIQ = 0x600000
WS_KVP = 0xB00000
WS_O = 0xD00000
H_BYTES = 2048 * 1536 * 2
PHIQ_BYTES = 2048 * 1280 * 2
KVP_BYTES = 16 * 32 * 840 * 4
O_BYTES = 2048 * 640 * 2

NST = 4
STG = 28672
LDS_WPHI = NST * STG
LDS_ZERO = LDS_WPHI + 12800
LDS_DUMMY = LDS_ZERO + 64
K1_LDS = 131072
LOG2E = 1.4426950408889634


def f2u(x):
    import struct
    return struct.unpack("<I", struct.pack("<f", x))[0]


def load_kernargs(a):
    a("s_load_dwordx16 s[4:19], s[0:1], 0")
    a("s_load_dwordx4 s[20:23], s[0:1], 64")
    a("s_load_dwordx2 s[24:25], s[0:1], 80")


def make_srd(a, d, base, nbytes, off=0):
    if off:
        a("s_add_u32 s%d, s%d, 0x%x" % (d, base, off))
        a("s_addc_u32 s%d, s%d, 0" % (d + 1, base + 1))
        a("s_and_b32 s%d, s%d, 0xffff" % (d + 1, d + 1))
    else:
        a("s_mov_b32 s%d, s%d" % (d, base))
        a("s_and_b32 s%d, s%d, 0xffff" % (d + 1, base + 1))
    a("s_mov_b32 s%d, 0x%x" % (d + 2, nbytes))
    a("s_mov_b32 s%d, 0x00020000" % (d + 3))


def xgroup_sum(a, x, t1, t2):
    a("v_mov_b32 %s, %s" % (vr(t1), vr(x)))
    a("v_mov_b32 %s, %s" % (vr(t2), vr(x)))
    a("v_permlane32_swap_b32 %s, %s" % (vr(t1), vr(t2)))
    a("v_add_f32 %s, %s, %s" % (vr(x), vr(t1), vr(t2)))
    a("v_mov_b32 %s, %s" % (vr(t1), vr(x)))
    a("v_mov_b32 %s, %s" % (vr(t2), vr(x)))
    a("v_permlane16_swap_b32 %s, %s" % (vr(t1), vr(t2)))
    a("v_add_f32 %s, %s, %s" % (vr(x), vr(t1), vr(t2)))


def rnd2(a, x, y, t):
    a("v_cvt_pk_bf16_f32 %s, %s, %s" % (vr(t), vr(x), vr(y)))
    a("v_lshlrev_b32 %s, 16, %s" % (vr(x), vr(t)))
    a("v_and_b32 %s, 0xffff0000, %s" % (vr(y), vr(t)))


def split3(a, c, d0, t1, t2, t3):
    a("v_cvt_pk_bf16_f32 %s, %s, %s" % (vr(t1), vr(c), vr(c)))
    a("v_lshlrev_b32 %s, 16, %s" % (vr(t3), vr(t1)))
    a("v_sub_f32 %s, %s, %s" % (vr(c), vr(c), vr(t3)))
    a("v_cvt_pk_bf16_f32 %s, %s, %s" % (vr(t2), vr(c), vr(c)))
    a("v_lshlrev_b32 %s, 16, %s" % (vr(t3), vr(t2)))
    a("v_sub_f32 %s, %s, %s" % (vr(c), vr(c), vr(t3)))
    a("v_cvt_pk_bf16_f32 %s, %s, %s" % (vr(t3), vr(c), vr(c)))
    a("v_and_b32 %s, 0xffff, %s" % (vr(t1), vr(t1)))
    a("v_lshl_or_b32 %s, %s, 16, %s" % (vr(t1), vr(t2), vr(t1)))
    a("v_and_b32 %s, 0xffff, %s" % (vr(t3), vr(t3)))
    a("v_cndmask_b32 %s, 0, %s, vcc" % (vr(d0), vr(t1)))
    a("v_cndmask_b32 %s, 0, %s, vcc" % (vr(d0 + 1), vr(t3)))
    a("v_mov_b32 %s, 0" % vr(d0 + 2))
    a("v_mov_b32 %s, 0" % vr(d0 + 3))


class K1Type:
    pass


def k1_path(a, typ):
    T = typ
    nxs = 16 if T == "GU" else 8
    BM = 256 if T == "GU" else 128
    NI = 2 if T == "KV" else 4
    NT = {"GU": 6, "KV": 10, "Q": 5}[T]
    rowb = 3072 if T == "GU" else 3840
    L = "L%s_" % T
    ACC = 0
    nacc = NT * NI * 4
    XF = 96
    WF = 112
    SUM = 152
    SQ = 156
    CS = 160
    VOFF = 170
    VX = 174
    VWE = 176
    VWO = 178
    VL = 180
    VW = 181
    T0 = 182
    RS = 200
    MF = 204

    def acc(t, i):
        return ACC + (t * NI + i) * 4

    a.comment("==== K1 path %s" % T)
    a("v_mov_b32 v199, v0")
    a("v_and_b32 %s, 63, v0" % vr(VL))
    a("v_lshrrev_b32 %s, 6, v0" % vr(VW))
    a("v_readfirstlane_b32 s47, %s" % vr(VW))
    a("s_lshl_b32 s46, s47, 10")
    a("v_lshrrev_b32 %s, 2, %s" % (vr(T0), vr(VL)))
    a("v_bfe_u32 %s, %s, 5, 1" % (vr(T0 + 1), vr(VL)))
    a("v_and_b32 %s, 3, %s" % (vr(T0 + 2), vr(VL)))
    a("v_mul_u32_u24 %s, 3, %s" % (vr(T0 + 3), vr(T0 + 1)))
    a("v_xor_b32 %s, %s, %s" % (vr(T0 + 3), vr(T0 + 2), vr(T0 + 3)))
    a("v_lshlrev_b32 %s, 1, %s" % (vr(T0 + 4), vr(T0 + 1)))
    a("v_xor_b32 %s, %s, %s" % (vr(T0 + 4), vr(T0 + 2), vr(T0 + 4)))
    a("s_mul_i32 s48, s51, %d" % BM)
    a("v_lshl_add_u32 %s, %s, 4, %s" % (vr(T0 + 5), vr(VW), vr(T0)))
    a("v_add_u32 %s, s48, %s" % (vr(T0 + 5), vr(T0 + 5)))
    a("s_movk_i32 s49, 1280")
    a("v_mul_lo_u32 %s, %s, s49" % (vr(T0 + 5), vr(T0 + 5)))
    a("v_lshl_add_u32 %s, %s, 4, %s" % (vr(VOFF), vr(T0 + 3), vr(T0 + 5)))
    a("v_and_b32 %s, 1, %s" % (vr(T0 + 6), vr(VW)))
    a("v_lshl_add_u32 %s, %s, 4, %s" % (vr(T0 + 6), vr(T0 + 6), vr(T0)))
    a("s_movk_i32 s49, %d" % rowb)
    a("v_mul_lo_u32 %s, %s, s49" % (vr(T0 + 6), vr(T0 + 6)))
    a("v_lshl_add_u32 %s, %s, 4, %s" % (vr(T0 + 6), vr(T0 + 4), vr(T0 + 6)))
    a("v_lshrrev_b32 %s, 1, %s" % (vr(T0 + 7), vr(VW)))
    if T == "GU":
        a("v_add_u32 %s, 0x%x, %s" % (vr(VOFF + 1), 128 * 1280, vr(VOFF)))
        a("s_mul_i32 s48, s52, 192")
        a("v_cmp_eq_u32 vcc, 3, %s" % vr(T0 + 7))
        a("v_cndmask_b32 %s, %s, 0, vcc" % (vr(T0 + 8), vr(T0 + 7)))
        a("v_lshl_add_u32 %s, %s, 6, %s" % (vr(T0 + 8), vr(T0 + 8), vr(T0 + 6)))
        a("v_add_u32 %s, s48, %s" % (vr(VOFF + 2), vr(T0 + 8)))
        a("v_lshl_add_u32 %s, %s, 6, %s" % (vr(T0 + 8), vr(T0 + 7), vr(T0 + 6)))
        a("v_add_u32 %s, s48, %s" % (vr(T0 + 8), vr(T0 + 8)))
        a("v_add_u32 %s, 64, %s" % (vr(VOFF + 3), vr(T0 + 8)))
        make_srd(a, 32, 14, 640 * 3072)
        make_srd(a, 36, 16, 640 * 3072)
        a("s_cmp_lt_u32 s47, 6")
        a("s_cselect_b32 s32, s32, s36")
        a("s_cselect_b32 s33, s33, s37")
        srd_j = [28, 28, 32, 36]
        isx_j = [True, True, False, False]
    else:
        if T == "Q":
            a("s_mul_i32 s48, s52, 640")
        else:
            a("s_mul_i32 s48, s52, 320")
            a("s_add_u32 s48, s48, 1280")
        a("v_lshl_add_u32 %s, %s, 6, %s" % (vr(T0 + 8), vr(T0 + 7), vr(T0 + 6)))
        a("v_add_u32 %s, s48, %s" % (vr(VOFF + 1), vr(T0 + 8)))
        if T == "Q":
            a("v_add_u32 %s, 256, %s" % (vr(VOFF + 2), vr(VOFF + 1)))
            a("v_add_u32 %s, 512, %s" % (vr(VOFF + 3), vr(VOFF + 1)))
        else:
            a("v_cmp_lt_u32 vcc, 0, %s" % vr(T0 + 7))
            a("v_mov_b32 %s, 256" % vr(T0 + 9))
            a("v_mov_b32 %s, %d" % (vr(T0 + 10), 256 + 960))
            a("v_cndmask_b32 %s, %s, %s, vcc" % (vr(T0 + 9), vr(T0 + 9), vr(T0 + 10)))
            a("v_add_u32 %s, %s, %s" % (vr(VOFF + 2), vr(T0 + 9), vr(VOFF + 1)))
            a("v_add_u32 %s, %d, %s" % (vr(VOFF + 3), 512 + 960, vr(VOFF + 1)))
        make_srd(a, 32, 6, 640 * 3840)
        srd_j = [28, 32, 32, 32]
        isx_j = [True, False, False, False]
    make_srd(a, 28, 4, 2048 * 1280)
    a("s_mov_b32 s44, 0")
    a("s_mov_b32 s45, 0")
    a("s_mov_b32 s53, 0x3f803f80")

    a("v_and_b32 %s, 15, %s" % (vr(T0), vr(VL)))
    a("v_lshrrev_b32 %s, 4, %s" % (vr(T0 + 1), vr(VL)))
    a("v_bfe_u32 %s, %s, 3, 1" % (vr(T0 + 2), vr(VL)))
    a("v_mul_u32_u24 %s, 3, %s" % (vr(T0 + 2), vr(T0 + 2)))
    a("v_xor_b32 %s, %s, %s" % (vr(T0 + 2), vr(T0 + 1), vr(T0 + 2)))
    a("v_lshlrev_b32 %s, 4, %s" % (vr(T0 + 2), vr(T0 + 2)))
    a("v_lshl_add_u32 %s, %s, 6, %s" % (vr(T0 + 2), vr(T0), vr(T0 + 2)))
    if T == "GU":
        wmsh, wnmask, tpw = 1, 1, 3
    elif T == "KV":
        wmsh, wnmask, tpw = 1, 1, 5
    else:
        wmsh, wnmask, tpw = 2, 3, 5
    a("v_lshrrev_b32 %s, %d, %s" % (vr(T0 + 3), wmsh, vr(VW)))
    a("v_and_b32 %s, %d, %s" % (vr(T0 + 4), wnmask, vr(VW)))
    a("v_mul_u32_u24 %s, %d, %s" % (vr(T0 + 5), NI * 1024, vr(T0 + 3)))
    a("v_add_u32 %s, %s, %s" % (vr(VX), vr(T0 + 5), vr(T0 + 2)))
    a("v_add_u32 %s, 0x10000, %s" % (vr(VX + 1), vr(VX)))
    a("v_mul_u32_u24 %s, %d, %s" % (vr(T0 + 5), tpw, vr(T0 + 4)))
    for (dst, dt) in ((VWE, 0), (VWO, 1)):
        a("v_add_u32 %s, %d, %s" % (vr(T0 + 6), dt, vr(T0 + 5)))
        a("v_lshrrev_b32 %s, 1, %s" % (vr(T0 + 7), vr(T0 + 6)))
        a("v_and_b32 %s, 1, %s" % (vr(T0 + 8), vr(T0 + 6)))
        a("v_bfe_u32 %s, %s, 1, 1" % (vr(T0 + 9), vr(T0)))
        a("v_lshl_add_u32 %s, %s, 1, %s" % (vr(T0 + 8), vr(T0 + 8), vr(T0 + 9)))
        a("v_and_b32 %s, 1, %s" % (vr(T0 + 9), vr(T0 + 1)))
        a("v_lshlrev_b32 %s, 1, %s" % (vr(T0 + 9), vr(T0 + 9)))
        a("v_xor_b32 %s, %s, %s" % (vr(T0 + 8), vr(T0 + 8), vr(T0 + 9)))
        a("v_lshlrev_b32 %s, 4, %s" % (vr(T0 + 8), vr(T0 + 8)))
        a("v_lshrrev_b32 %s, 2, %s" % (vr(T0 + 9), vr(T0)))
        a("v_lshl_add_u32 %s, %s, 3, %s" % (vr(T0 + 9), vr(T0 + 1), vr(T0 + 9)))
        a("v_lshl_add_u32 %s, %s, 6, %s" % (vr(T0 + 8), vr(T0 + 9), vr(T0 + 8)))
        a("v_and_b32 %s, 1, %s" % (vr(T0 + 9), vr(T0)))
        a("v_lshl_add_u32 %s, %s, 3, %s" % (vr(T0 + 8), vr(T0 + 9), vr(T0 + 8)))
        a("v_lshl_add_u32 %s, %s, 11, %s" % (vr(T0 + 8), vr(T0 + 7), vr(T0 + 8)))
        a("v_add_u32 %s, %d, %s" % (vr(dst), nxs * 1024, vr(T0 + 8)))
        a("v_add_u32 %s, 0x10000, %s" % (vr(dst + 1), vr(dst)))

    def lds(base, off):
        w = off >> 16
        return vr(base + w), off & 0xFFFF

    for r in range(nacc):
        a("v_mov_b32 %s, 0" % vr(ACC + r))
    for r in range(SUM, CS + NT):
        a("v_mov_b32 %s, 0" % vr(r))

    if T != "GU":
        nh = 16 if T == "Q" else 8
        nb = nh * 800
        make_srd(a, 36, 8, 32 * 800)
        a("s_mul_i32 s48, s52, %d" % nb)
        a("v_lshlrev_b32 %s, 4, v199" % vr(T0))
        a("v_add_u32 %s, s48, %s" % (vr(T0 + 1), vr(T0)))
        a("buffer_load_dwordx4 v[220:223], %s, s[36:39], 0 offen" % vr(T0 + 1))
        if nb > 8192:
            a("v_add_u32 %s, 8192, %s" % (vr(T0 + 2), vr(T0 + 1)))
            a("buffer_load_dwordx4 v[224:227], %s, s[36:39], 0 offen" % vr(T0 + 2))

    lab = [0]

    def loads(buf):
        for j in range(4):
            if j == 3:
                lab[0] += 1
                a("s_cmp_lt_u32 s47, 4")
                a("s_cbranch_scc0 %sskip%d" % (L, lab[0]))
            a("s_add_u32 m0, s46, 0x%x" % (buf * STG + j * 8192))
            a("buffer_load_dwordx4 %s, s[%d:%d], s%d offen lds" % (vr(VOFF + j), srd_j[j], srd_j[j] + 3,
                                                                 44 if isx_j[j] else 45))
            if j == 3:
                a.label("%sskip%d" % (L, lab[0]))
        a("s_add_u32 s44, s44, 64")
        a("s_add_u32 s45, s45, %d" % (32 * rowb))

    a.auto = True
    for s in range(NST - 1):
        loads(s)
    if T != "GU":
        nh = 16 if T == "Q" else 8
        nb = nh * 800
        a("s_waitcnt vmcnt(%d)" % (3 * (NST - 1)))
        a.vm = []
        a("v_lshlrev_b32 %s, 4, v199" % vr(T0))
        a("v_add_u32 %s, %d, %s" % (vr(T0 + 1), LDS_WPHI, vr(T0)))
        a("v_mov_b32 %s, %d" % (vr(T0 + 3), LDS_DUMMY))
        if nb > 8192:
            a("ds_write_b128 %s, v[220:223]" % vr(T0 + 1))
            a("v_add_u32 %s, 8192, %s" % (vr(T0 + 2), vr(T0 + 1)))
            a("v_cmp_gt_u32 vcc, %d, %s" % (nb - 8192, vr(T0)))
            a("v_cndmask_b32 %s, %s, %s, vcc" % (vr(T0 + 2), vr(T0 + 3), vr(T0 + 2)))
            a("ds_write_b128 %s, v[224:227]" % vr(T0 + 2))
        else:
            a("v_cmp_gt_u32 vcc, %d, %s" % (nb, vr(T0)))
            a("v_cndmask_b32 %s, %s, %s, vcc" % (vr(T0 + 1), vr(T0 + 3), vr(T0 + 1)))
            a("ds_write_b128 %s, v[220:223]" % vr(T0 + 1))
        for r in range(4):
            a("v_mov_b32 %s, 0" % vr(224 + r))
        a("v_and_b32 %s, 3, v199" % vr(T0))
        a("v_lshlrev_b32 %s, 4, %s" % (vr(T0), vr(T0)))
        a("v_add_u32 %s, %d, %s" % (vr(T0), LDS_ZERO, vr(T0)))
        a("ds_write_b128 %s, v[224:227]" % vr(T0))
        a("s_waitcnt lgkmcnt(0)")
    a.vm = []

    def stage(buf, do_load, vmn):
        a("s_waitcnt vmcnt(%d)" % vmn)
        a("s_barrier")
        if do_load:
            loads((buf + NST - 1) % NST)
        a.vm = []
        base = buf * STG

        def rdx(i):
            r, o = lds(VX, base + i * 1024)
            a("ds_read_b128 %s, %s offset:%d" % (vr(XF + 4 * i, 4), r, o))

        def tile_off(t):
            if T == "GU":
                j, up = t % 3, t // 3
                extra = up * 3 * 2048
            elif T == "KV":
                j, up = t % 5, t // 5
                extra = up * 5 * 2048
            else:
                j, extra = t, 0
            return (VWE if j % 2 == 0 else VWO), (j // 2) * 2048 + extra

        def rdw(t):
            b, o = tile_off(t)
            for h in range(2):
                r, oo = lds(b, base + o + h * 256)
                a("ds_read_b64_tr_b16 %s, %s offset:%d" % (vr(WF + 4 * t + 2 * h, 2), r, oo))
        rdx(0)
        rdw(0)
        for i in range(1, NI):
            rdx(i)
        for t in range(1, NT):
            rdw(t)
        dots = []
        for i in range(NI):
            for r in range(4):
                dots.append("v_dot2c_f32_bf16 %s, s53, %s" % (vr(SUM + i), vr(XF + 4 * i + r)))
                dots.append("v_dot2c_f32_bf16 %s, %s, %s" % (vr(SQ + i), vr(XF + 4 * i + r), vr(XF + 4 * i + r)))
        wd = [["v_dot2c_f32_bf16 %s, s53, %s" % (vr(CS + t), vr(WF + 4 * t + r)) for r in range(4)] for t in range(NT)]
        nm = NT * NI
        k = 0
        per = -(-len(dots) // max(1, nm - NI))
        for t in range(NT):
            for i in range(NI):
                if T == "KV" and t >= 5:
                    a("v_mfma_f32_16x16x32_bf16 %s, %s, %s, %s" % (vr(acc(t, i), 4), vr(XF + 4 * i, 4), vr(WF + 4 * t, 4), vr(acc(t, i), 4)))
                else:
                    a("v_mfma_f32_16x16x32_bf16 %s, %s, %s, %s" % (vr(acc(t, i), 4), vr(WF + 4 * t, 4), vr(XF + 4 * i, 4), vr(acc(t, i), 4)))
                n_w = 4 // NI
                for q in range(n_w):
                    a(wd[t][i * n_w + q])
                if t >= 1:
                    for q in range(per):
                        if k < len(dots):
                            a(dots[k])
                            k += 1
        while k < len(dots):
            a(dots[k])
            k += 1

    a("s_mov_b32 s50, 0")
    a.label(L + "loop")
    a.hist = []
    for b in range(NST):
        stage(b, True, 3 * (NST - 2))
    a("s_add_u32 s50, s50, 1")
    a("s_cmp_lt_u32 s50, %d" % (16 // NST))
    a("s_cbranch_scc1 %sloop" % L)
    a.hist = []
    stage(0, True, 6)
    stage(1, False, 6)
    stage(2, False, 3)
    stage(3, False, 0)

    for i in range(NI):
        xgroup_sum(a, SUM + i, T0, T0 + 1)
        xgroup_sum(a, SQ + i, T0, T0 + 1)
    for t in range(NT):
        xgroup_sum(a, CS + t, T0, T0 + 1)
    a("v_cmp_gt_u32 vcc, 16, %s" % vr(VL))
    a("s_mov_b32 s48, 0x%x" % f2u(1.0 / 640.0))
    for i in range(NI):
        a("v_mul_f32 %s, s48, %s" % (vr(T0), vr(SUM + i)))
        a("v_mul_f32 %s, s48, %s" % (vr(T0 + 1), vr(SQ + i)))
        a("v_fma_f32 %s, -%s, %s, %s" % (vr(T0 + 1), vr(T0), vr(T0), vr(T0 + 1)))
        a("v_max_f32 %s, 0, %s" % (vr(T0 + 1), vr(T0 + 1)))
        a("v_cvt_pk_bf16_f32 %s, %s, %s" % (vr(T0 + 2), vr(T0), vr(T0 + 1)))
        a("v_and_b32 %s, 0xffff0000, %s" % (vr(T0 + 1), vr(T0 + 2)))
        a("v_add_f32 %s, 0x%x, %s" % (vr(T0 + 1), f2u(1e-5), vr(T0 + 1)))
        a("v_cvt_pk_bf16_f32 %s, %s, %s" % (vr(T0 + 1), vr(T0 + 1), vr(T0 + 1)))
        a("v_lshlrev_b32 %s, 16, %s" % (vr(T0 + 1), vr(T0 + 1)))
        a("v_sqrt_f32 %s, %s" % (vr(T0 + 1), vr(T0 + 1)))
        a("v_cvt_pk_bf16_f32 %s, %s, %s" % (vr(T0 + 1), vr(T0 + 1), vr(T0 + 1)))
        a("v_lshlrev_b32 %s, 16, %s" % (vr(T0 + 1), vr(T0 + 1)))
        a("v_rcp_f32 %s, %s" % (vr(RS + i), vr(T0 + 1)))
        a("v_and_b32 %s, 0xffff, %s" % (vr(T0 + 2), vr(T0 + 2)))
        a("v_xor_b32 %s, 0x8000, %s" % (vr(T0 + 2), vr(T0 + 2)))
        a("v_lshl_or_b32 %s, %s, 16, %s" % (vr(T0 + 3), vr(T0 + 2), vr(T0 + 2)))
        a("v_cndmask_b32 %s, 0, %s, vcc" % (vr(MF + 4 * i), vr(T0 + 3)))
        a("v_cndmask_b32 %s, 0, %s, vcc" % (vr(MF + 4 * i + 1), vr(T0 + 2)))
        a("v_mov_b32 %s, 0" % vr(MF + 4 * i + 2))
        a("v_mov_b32 %s, 0" % vr(MF + 4 * i + 3))
    for t in range(NT):
        split3(a, CS + t, WF + 4 * t, T0, T0 + 1, T0 + 2)
    for t in range(NT):
        for i in range(NI):
            if T == "KV" and t >= 5:
                a("v_mfma_f32_16x16x32_bf16 %s, %s, %s, %s" % (vr(acc(t, i), 4), vr(MF + 4 * i, 4), vr(WF + 4 * t, 4), vr(acc(t, i), 4)))
            else:
                a("v_mfma_f32_16x16x32_bf16 %s, %s, %s, %s" % (vr(acc(t, i), 4), vr(WF + 4 * t, 4), vr(MF + 4 * i, 4), vr(acc(t, i), 4)))

    R = dict(ACC=ACC, XF=XF, WF=WF, VL=VL, VW=VW, T0=T0, RS=RS, MF=MF, NI=NI, NT=NT, acc=acc, L=L)
    if T == "GU":
        epi_gu(a, R)
    elif T == "Q":
        epi_q(a, R)
    else:
        epi_kv(a, R)
    a("s_endpgm")


def epi_gu(a, R):
    acc, T0, RS, VL, VW = R["acc"], R["T0"], R["RS"], R["VL"], R["VW"]
    make_srd(a, 40, 24, H_BYTES, WS_H)
    A0 = 220
    a("v_and_b32 %s, 15, %s" % (vr(T0), vr(VL)))
    a("v_lshrrev_b32 %s, 1, %s" % (vr(T0 + 1), vr(VW)))
    a("v_lshl_add_u32 %s, %s, 6, %s" % (vr(T0), vr(T0 + 1), vr(T0)))
    a("s_lshl_b32 s48, s51, 8")
    a("v_add_u32 %s, s48, %s" % (vr(T0), vr(T0)))
    a("s_movk_i32 s49, 3072")
    a("v_mul_lo_u32 %s, %s, s49" % (vr(T0), vr(T0)))
    a("v_and_b32 %s, 1, %s" % (vr(T0 + 1), vr(VW)))
    a("v_mul_u32_u24 %s, 96, %s" % (vr(T0 + 1), vr(T0 + 1)))
    a("v_lshrrev_b32 %s, 4, %s" % (vr(T0 + 2), vr(VL)))
    a("v_lshl_add_u32 %s, %s, 3, %s" % (vr(T0 + 1), vr(T0 + 2), vr(T0 + 1)))
    a("s_mul_i32 s48, s52, 192")
    a("v_add3_u32 %s, %s, %s, s48" % (vr(A0), vr(T0), vr(T0 + 1)))
    c0 = 2.0 * 0.7978845608028654 * LOG2E
    c1 = c0 * 0.044715
    a("s_mov_b32 s48, 0x%x" % f2u(-c1))
    a("v_mov_b32 %s, 0x%x" % (vr(A0 + 1), f2u(-c0)))
    a("s_mov_b32 s49, %d" % (16 * 3072))
    t = T0
    for i in range(4):
        for j in range(3):
            G, U = acc(j, i), acc(3 + j, i)
            for r in range(4):
                a("v_mul_f32 %s, %s, %s" % (vr(G + r), vr(G + r), vr(RS + i)))
                a("v_mul_f32 %s, %s, %s" % (vr(U + r), vr(U + r), vr(RS + i)))
            rnd2(a, G, G + 1, t)
            rnd2(a, G + 2, G + 3, t + 1)
            rnd2(a, U, U + 1, t + 2)
            rnd2(a, U + 2, U + 3, t + 3)
            for r in range(4):
                a("v_mul_f32 %s, %s, %s" % (vr(t + 4 + r), vr(G + r), vr(G + r)))
            for r in range(4):
                a("v_fma_f32 %s, %s, s48, %s" % (vr(t + 4 + r), vr(t + 4 + r), vr(A0 + 1)))
            for r in range(4):
                a("v_mul_f32 %s, %s, %s" % (vr(t + 4 + r), vr(t + 4 + r), vr(G + r)))
            for r in range(4):
                a("v_exp_f32 %s, %s" % (vr(t + 4 + r), vr(t + 4 + r)))
            for r in range(4):
                a("v_add_f32 %s, 1.0, %s" % (vr(t + 4 + r), vr(t + 4 + r)))
            for r in range(4):
                a("v_rcp_f32 %s, %s" % (vr(t + 4 + r), vr(t + 4 + r)))
            for r in range(4):
                a("v_mul_f32 %s, %s, %s" % (vr(G + r), vr(G + r), vr(t + 4 + r)))
            rnd2(a, G, G + 1, t)
            rnd2(a, G + 2, G + 3, t + 1)
            for r in range(4):
                a("v_mul_f32 %s, %s, %s" % (vr(G + r), vr(G + r), vr(U + r)))
            a("v_cvt_pk_bf16_f32 %s, %s, %s" % (vr(U), vr(G), vr(G + 1)))
            a("v_cvt_pk_bf16_f32 %s, %s, %s" % (vr(U + 1), vr(G + 2), vr(G + 3)))
            a("buffer_store_dwordx2 %s, %s, s[40:43], 0 offen offset:%d" % (vr(U, 2), vr(A0), j * 32))
        if i < 3:
            a("v_add_u32 %s, s49, %s" % (vr(A0), vr(A0)))


def wphi_frags(a, R, AF, AD):
    T0, VL, VW = R["T0"], R["VL"], R["VW"]
    wnmask = R["wnmask"]
    a("v_and_b32 %s, 3, %s" % (vr(T0), vr(VL)))
    a("v_bfe_u32 %s, %s, 2, 2" % (vr(T0 + 1), vr(VL)))
    a("v_lshrrev_b32 %s, 4, %s" % (vr(T0 + 2), vr(VL)))
    a("v_and_b32 %s, %d, %s" % (vr(T0 + 3), wnmask, vr(VW)))
    a("v_lshl_add_u32 %s, %s, 2, %s" % (vr(T0 + 3), vr(T0 + 3), vr(T0)))
    a("v_mul_u32_u24 %s, 800, %s" % (vr(T0 + 3), vr(T0 + 3)))
    a("v_add_u32 %s, %d, %s" % (vr(T0 + 3), LDS_WPHI, vr(T0 + 3)))
    a("v_mul_u32_u24 %s, 20, %s" % (vr(T0 + 4), vr(T0)))
    a("v_lshlrev_b32 %s, 2, %s" % (vr(T0 + 5), vr(T0 + 2)))
    a("v_sub_u32 %s, %s, %s" % (vr(T0 + 5), vr(T0 + 5), vr(T0 + 4)))
    a("v_mov_b32 %s, %d" % (vr(T0 + 8), LDS_ZERO))
    combos = [(0, 0), (0, 1), (1, 0), (1, 1), (2, 0)]
    for n, (c, hh) in enumerate(combos):
        a("v_add_u32 %s, %d, %s" % (vr(T0 + 6), 32 * c + 16 * hh, vr(T0 + 5)))
        a("v_cmp_gt_u32 vcc, 20, %s" % vr(T0 + 6))
        a("v_add_u32 %s, %s, %s" % (vr(T0 + 6), vr(T0 + 6), vr(T0 + 1)))
        a("v_mul_u32_u24 %s, 40, %s" % (vr(T0 + 6), vr(T0 + 6)))
        a("v_add_u32 %s, %s, %s" % (vr(T0 + 6), vr(T0 + 6), vr(T0 + 3)))
        a("v_cndmask_b32 %s, %s, %s, vcc" % (vr(AD + n), vr(T0 + 8), vr(T0 + 6)))
    for tp in range(5):
        for n, (c, hh) in enumerate(combos):
            a("ds_read_b64_tr_b16 %s, %s offset:%d" % (vr(AF + (tp * 3 + c) * 4 + 2 * hh, 2), vr(AD + n), tp * 8))
        a("v_mov_b32 %s, 0" % vr(AF + (tp * 3 + 2) * 4 + 2))
        a("v_mov_b32 %s, 0" % vr(AF + (tp * 3 + 2) * 4 + 3))


def phi_tile(a, R, i, AF, BQ, P, E, PK):
    acc, T0, RS = R["acc"], R["T0"], R["RS"]
    for t in range(5):
        A = acc(t, i)
        for r in range(4):
            a("v_mul_f32 %s, %s, %s" % (vr(A + r), vr(A + r), vr(RS + i)))
        a("v_cvt_pk_bf16_f32 %s, %s, %s" % (vr(BQ + 2 * t), vr(A), vr(A + 1)))
        a("v_cvt_pk_bf16_f32 %s, %s, %s" % (vr(BQ + 2 * t + 1), vr(A + 2), vr(A + 3)))
    a("v_mov_b32 %s, 0" % vr(BQ + 10))
    a("v_mov_b32 %s, 0" % vr(BQ + 11))
    for tp in range(5):
        for c in range(3):
            a("v_mfma_f32_16x16x32_bf16 %s, %s, %s, %s" % (vr(P + 4 * tp, 4), vr(AF + (tp * 3 + c) * 4, 4), vr(BQ + 4 * c, 4),
                                                         "0" if c == 0 else vr(P + 4 * tp, 4)))
    for r in range(0, 20, 2):
        rnd2(a, P + r, P + r + 1, T0)
    mx, mn = T0 + 1, T0 + 2
    a("v_max3_f32 %s, %s, %s, %s" % (vr(mx), vr(P), vr(P + 1), vr(P + 2)))
    a("v_min3_f32 %s, %s, %s, %s" % (vr(mn), vr(P), vr(P + 1), vr(P + 2)))
    for r in range(3, 19, 2):
        a("v_max3_f32 %s, %s, %s, %s" % (vr(mx), vr(mx), vr(P + r), vr(P + r + 1)))
        a("v_min3_f32 %s, %s, %s, %s" % (vr(mn), vr(mn), vr(P + r), vr(P + r + 1)))
    a("v_max_f32 %s, %s, %s" % (vr(mx), vr(mx), vr(P + 19)))
    a("v_min_f32 %s, %s, %s" % (vr(mn), vr(mn), vr(P + 19)))
    a("s_mov_b32 s48, 0x%x" % f2u(LOG2E))
    for r in range(20):
        a("v_sub_f32 %s, %s, %s" % (vr(E + r), vr(P + r), vr(mx)))
        a("v_sub_f32 %s, %s, %s" % (vr(P + r), vr(mn), vr(P + r)))
    for r in range(20):
        a("v_mul_f32 %s, s48, %s" % (vr(E + r), vr(E + r)))
        a("v_mul_f32 %s, s48, %s" % (vr(P + r), vr(P + r)))
    for r in range(20):
        a("v_exp_f32 %s, %s" % (vr(E + r), vr(E + r)))
        a("v_exp_f32 %s, %s" % (vr(P + r), vr(P + r)))
    s1, s2 = T0 + 3, T0 + 4
    a("v_add_f32 %s, %s, %s" % (vr(s1), vr(E), vr(E + 1)))
    a("v_add_f32 %s, %s, %s" % (vr(s2), vr(P), vr(P + 1)))
    for r in range(2, 20):
        a("v_add_f32 %s, %s, %s" % (vr(s1), vr(s1), vr(E + r)))
        a("v_add_f32 %s, %s, %s" % (vr(s2), vr(s2), vr(P + r)))
    a("v_rcp_f32 %s, %s" % (vr(s1), vr(s1)))
    a("v_rcp_f32 %s, %s" % (vr(s2), vr(s2)))
    for r in range(20):
        a("v_mul_f32 %s, %s, %s" % (vr(E + r), vr(E + r), vr(s1)))
        a("v_mul_f32 %s, %s, %s" % (vr(P + r), vr(P + r), vr(s2)))
    for r in range(10):
        a("v_cvt_pk_bf16_f32 %s, %s, %s" % (vr(PK + r), vr(E + 2 * r), vr(E + 2 * r + 1)))
        a("v_cvt_pk_bf16_f32 %s, %s, %s" % (vr(PK + 10 + r), vr(P + 2 * r), vr(P + 2 * r + 1)))


def epi_q(a, R):
    T0, VL, VW = R["T0"], R["VL"], R["VW"]
    R["wnmask"] = 3
    AF = 96
    AD = 156
    BQ = 164
    P = 220
    E = 240
    P, E = 216, 236
    PK = 80
    P, E = 204, 224
    PK = 80
    make_srd(a, 40, 24, PHIQ_BYTES, WS_PHIQ)
    wphi_frags(a, R, AF, AD)
    A0 = 176
    a("v_and_b32 %s, 15, %s" % (vr(T0), vr(VL)))
    a("v_lshrrev_b32 %s, 2, %s" % (vr(T0 + 1), vr(VW)))
    a("v_lshl_add_u32 %s, %s, 6, %s" % (vr(T0), vr(T0 + 1), vr(T0)))
    a("s_lshl_b32 s48, s51, 7")
    a("v_add_u32 %s, s48, %s" % (vr(T0), vr(T0)))
    a("s_movk_i32 s49, 2560")
    a("v_mul_lo_u32 %s, %s, s49" % (vr(T0), vr(T0)))
    a("v_and_b32 %s, 3, %s" % (vr(T0 + 1), vr(VW)))
    a("v_lshrrev_b32 %s, 4, %s" % (vr(T0 + 2), vr(VL)))
    a("v_lshl_add_u32 %s, %s, 2, %s" % (vr(T0 + 1), vr(T0 + 1), vr(T0 + 2)))
    a("v_mul_u32_u24 %s, 80, %s" % (vr(T0 + 1), vr(T0 + 1)))
    a("s_mul_i32 s48, s52, 1280")
    a("v_add3_u32 %s, %s, %s, s48" % (vr(A0), vr(T0), vr(T0 + 1)))
    a("s_mov_b32 s49, %d" % (16 * 2560))
    PK = 80
    for i in range(4):
        PKa = 80
        phi_tile_split(a, R, i, AF, BQ, P, E, PKa, 244)
        for q in range(4):
            a("buffer_store_dwordx4 %s, %s, s[40:43], 0 offen offset:%d" % (vr(PKa + 4 * q, 4), vr(A0), 16 * q))
        a("buffer_store_dwordx4 %s, %s, s[40:43], 0 offen offset:64" % (vr(244, 4), vr(A0)))
        if i < 3:
            a("v_add_u32 %s, s49, %s" % (vr(A0), vr(A0)))


def phi_tile_split(a, R, i, AF, BQ, P, E, PKa, PKb):
    class Dummy:
        pass
    lines_before = len(a.lines)
    phi_tile_core(a, R, i, AF, BQ, P, E)
    def pk(r):
        return PKa + r if r < 16 else PKb + (r - 16)
    for r in range(10):
        a("v_cvt_pk_bf16_f32 %s, %s, %s" % (vr(pk(r)), vr(E + 2 * r), vr(E + 2 * r + 1)))
        a("v_cvt_pk_bf16_f32 %s, %s, %s" % (vr(pk(10 + r)), vr(P + 2 * r), vr(P + 2 * r + 1)))


def phi_tile_core(a, R, i, AF, BQ, P, E):
    acc, T0, RS = R["acc"], R["T0"], R["RS"]
    for t in range(5):
        A = acc(t, i)
        for r in range(4):
            a("v_mul_f32 %s, %s, %s" % (vr(A + r), vr(A + r), vr(RS + i)))
        a("v_cvt_pk_bf16_f32 %s, %s, %s" % (vr(BQ + 2 * t), vr(A), vr(A + 1)))
        a("v_cvt_pk_bf16_f32 %s, %s, %s" % (vr(BQ + 2 * t + 1), vr(A + 2), vr(A + 3)))
    a("v_mov_b32 %s, 0" % vr(BQ + 10))
    a("v_mov_b32 %s, 0" % vr(BQ + 11))
    for tp in range(5):
        for c in range(3):
            a("v_mfma_f32_16x16x32_bf16 %s, %s, %s, %s" % (vr(P + 4 * tp, 4), vr(AF + (tp * 3 + c) * 4, 4), vr(BQ + 4 * c, 4),
                                                         "0" if c == 0 else vr(P + 4 * tp, 4)))
    for r in range(0, 20, 2):
        rnd2(a, P + r, P + r + 1, T0)
    mx, mn = T0 + 1, T0 + 2
    a("v_max3_f32 %s, %s, %s, %s" % (vr(mx), vr(P), vr(P + 1), vr(P + 2)))
    a("v_min3_f32 %s, %s, %s, %s" % (vr(mn), vr(P), vr(P + 1), vr(P + 2)))
    for r in range(3, 19, 2):
        a("v_max3_f32 %s, %s, %s, %s" % (vr(mx), vr(mx), vr(P + r), vr(P + r + 1)))
        a("v_min3_f32 %s, %s, %s, %s" % (vr(mn), vr(mn), vr(P + r), vr(P + r + 1)))
    a("v_max_f32 %s, %s, %s" % (vr(mx), vr(mx), vr(P + 19)))
    a("v_min_f32 %s, %s, %s" % (vr(mn), vr(mn), vr(P + 19)))
    a("s_mov_b32 s48, 0x%x" % f2u(LOG2E))
    for r in range(20):
        a("v_sub_f32 %s, %s, %s" % (vr(E + r), vr(P + r), vr(mx)))
        a("v_sub_f32 %s, %s, %s" % (vr(P + r), vr(mn), vr(P + r)))
    for r in range(20):
        a("v_mul_f32 %s, s48, %s" % (vr(E + r), vr(E + r)))
        a("v_mul_f32 %s, s48, %s" % (vr(P + r), vr(P + r)))
    for r in range(20):
        a("v_exp_f32 %s, %s" % (vr(E + r), vr(E + r)))
        a("v_exp_f32 %s, %s" % (vr(P + r), vr(P + r)))
    s1, s2 = T0 + 3, T0 + 4
    a("v_add_f32 %s, %s, %s" % (vr(s1), vr(E), vr(E + 1)))
    a("v_add_f32 %s, %s, %s" % (vr(s2), vr(P), vr(P + 1)))
    for r in range(2, 20):
        a("v_add_f32 %s, %s, %s" % (vr(s1), vr(s1), vr(E + r)))
        a("v_add_f32 %s, %s, %s" % (vr(s2), vr(s2), vr(P + r)))
    a("v_rcp_f32 %s, %s" % (vr(s1), vr(s1)))
    a("v_rcp_f32 %s, %s" % (vr(s2), vr(s2)))
    for r in range(20):
        a("v_mul_f32 %s, %s, %s" % (vr(E + r), vr(E + r), vr(s1)))
        a("v_mul_f32 %s, %s, %s" % (vr(P + r), vr(P + r), vr(s2)))


def epi_kv(a, R):
    acc, T0, RS, VL, VW, MF = R["acc"], R["T0"], R["RS"], R["VL"], R["VW"], R["MF"]
    R["wnmask"] = 1
    L = R["L"]
    AF = 96
    AD = 156
    BQ = 164
    P, E = 204, 224
    ONE = 80
    RSF = 84
    RR = 88
    a("v_cmp_gt_u32 vcc, 16, %s" % vr(VL))
    a("v_mov_b32 %s, 0x3f803f80" % vr(T0))
    a("v_mov_b32 %s, 0x3f80" % vr(T0 + 1))
    a("v_cndmask_b32 %s, 0, %s, vcc" % (vr(ONE), vr(T0)))
    a("v_cndmask_b32 %s, 0, %s, vcc" % (vr(ONE + 1), vr(T0 + 1)))
    a("v_mov_b32 %s, 0" % vr(ONE + 2))
    a("v_mov_b32 %s, 0" % vr(ONE + 3))
    VB = 176
    for i in range(2):
        a("v_mov_b32 %s, %s" % (vr(T0 + 4), vr(RS + i)))
        split3(a, T0 + 4, RSF, T0, T0 + 1, T0 + 2)
        a("v_mfma_f32_16x16x32_bf16 %s, %s, %s, 0" % (vr(RR, 4), vr(RSF, 4), vr(ONE, 4)))
        for j in range(5):
            A = acc(5 + j, i)
            for r in range(4):
                a("v_mul_f32 %s, %s, %s" % (vr(A + r), vr(A + r), vr(RR + r)))
    for j in range(5):
        A0_, A1_ = acc(5 + j, 0), acc(5 + j, 1)
        a("v_cvt_pk_bf16_f32 %s, %s, %s" % (vr(A0_), vr(A0_), vr(A0_ + 1)))
        a("v_cvt_pk_bf16_f32 %s, %s, %s" % (vr(A0_ + 1), vr(A0_ + 2), vr(A0_ + 3)))
        a("v_cvt_pk_bf16_f32 %s, %s, %s" % (vr(A0_ + 2), vr(A1_), vr(A1_ + 1)))
        a("v_cvt_pk_bf16_f32 %s, %s, %s" % (vr(A0_ + 3), vr(A1_ + 2), vr(A1_ + 3)))
    wphi_frags(a, R, AF, AD)
    PK0a, PK0b = 80, 244
    phi_tile_split(a, R, 0, AF, BQ, P, E, PK0a, PK0b)
    phi_tile_core(a, R, 1, AF, BQ, P, E)
    PK1 = 0
    for r in range(10):
        a("v_cvt_pk_bf16_f32 %s, %s, %s" % (vr(PK1 + r), vr(E + 2 * r), vr(E + 2 * r + 1)))
        a("v_cvt_pk_bf16_f32 %s, %s, %s" % (vr(PK1 + 10 + r), vr(P + 2 * r), vr(P + 2 * r + 1)))

    def pk0(c):
        return PK0a + 4 * c if c < 4 else PK0b
    SEL = 20
    a("v_and_b32 %s, 15, %s" % (vr(T0), vr(VL)))
    a("v_lshrrev_b32 %s, 4, %s" % (vr(T0 + 1), vr(VL)))
    a("v_lshrrev_b32 %s, 3, %s" % (vr(T0 + 2), vr(T0)))
    a("v_and_b32 %s, 7, %s" % (vr(T0 + 3), vr(T0)))
    a("v_and_b32 %s, 1, %s" % (vr(T0 + 4), vr(T0 + 3)))
    a("v_lshlrev_b32 %s, 4, %s" % (vr(T0 + 4), vr(T0 + 4)))
    a("v_mov_b32 %s, 0x3f80" % vr(T0 + 5))
    a("v_lshlrev_b32 %s, %s, %s" % (vr(T0 + 5), vr(T0 + 4), vr(T0 + 5)))
    a("v_lshrrev_b32 %s, 1, %s" % (vr(T0 + 3), vr(T0 + 3)))
    for aa in range(2):
        a("v_add_u32 %s, %d, %s" % (vr(T0 + 6), 2 * aa, vr(T0 + 2)))
        a("v_cmp_eq_u32 s[54:55], %s, %s" % (vr(T0 + 6), vr(T0 + 1)))
        a("v_cndmask_b32 %s, 0, %s, s[54:55]" % (vr(T0 + 7), vr(T0 + 5)))
        for r in range(4):
            a("v_cmp_eq_u32 vcc, %d, %s" % (r, vr(T0 + 3)))
            a("v_cndmask_b32 %s, 0, %s, vcc" % (vr(SEL + 4 * aa + r), vr(T0 + 7)))
    ONES = 28
    for r in range(4):
        a("v_mov_b32 %s, 0x3f803f80" % vr(ONES + r))
    WA = AF
    a("v_mul_u32_u24 %s, 13440, %s" % (vr(T0 + 8), vr(VW)))
    a("v_and_b32 %s, 1, %s" % (vr(T0 + 9), vr(T0 + 1)))
    a("v_lshl_add_u32 %s, %s, 4, %s" % (vr(T0 + 8), vr(T0 + 9), vr(T0 + 8)))
    a("v_lshrrev_b32 %s, 1, %s" % (vr(T0 + 9), vr(T0 + 1)))
    a("v_mov_b32 %s, %d" % (vr(T0 + 10), LDS_DUMMY))
    pairs = []
    n = 0
    for aa in range(2):
        a("v_add_u32 %s, %d, %s" % (vr(T0 + 11), 2 * aa, vr(T0 + 9)))
        a("v_mul_u32_u24 %s, 3360, %s" % (vr(T0 + 12), vr(T0 + 11)))
        a("v_add_u32 %s, %s, %s" % (vr(T0 + 12), vr(T0 + 12), vr(T0 + 8)))
        a("v_mul_u32_u24 %s, 20, %s" % (vr(T0 + 13), vr(T0 + 11)))
        for Tt in ((0, 1, 2) if aa == 0 else (2, 3, 4)):
            a("v_add_u32 %s, %d, %s" % (vr(T0 + 14), 16 * Tt, vr(T0)))
            a("v_sub_u32 %s, %s, %s" % (vr(T0 + 14), vr(T0 + 14), vr(T0 + 13)))
            a("v_cmp_gt_u32 vcc, 20, %s" % vr(T0 + 14))
            a("v_mul_u32_u24 %s, 160, %s" % (vr(T0 + 14), vr(T0 + 14)))
            a("v_add_u32 %s, %s, %s" % (vr(T0 + 14), vr(T0 + 14), vr(T0 + 12)))
            a("v_cndmask_b32 %s, %s, %s, vcc" % (vr(WA + n), vr(T0 + 10), vr(T0 + 14)))
            pairs.append((aa, Tt, WA + n))
            n += 1
        a("v_cmp_eq_u32 vcc, 0, %s" % vr(T0))
        a("v_add_u32 %s, 3200, %s" % (vr(T0 + 14), vr(T0 + 12)))
        a("v_cndmask_b32 %s, %s, %s, vcc" % (vr(WA + 6 + aa), vr(T0 + 10), vr(T0 + 14)))
    a("s_waitcnt lgkmcnt(0)")
    a("s_barrier")
    D0, D1 = 204, 208
    A2 = 212
    OUT = 216
    for c in range(5):
        for aa in range(2):
            a("v_mfma_f32_16x16x32_bf16 %s, %s, %s, 0" % (vr(D0, 4), vr(pk0(c), 4), vr(SEL + 4 * aa, 4)))
            a("v_mfma_f32_16x16x32_bf16 %s, %s, %s, 0" % (vr(D1, 4), vr(PK1 + 4 * c, 4), vr(SEL + 4 * aa, 4)))
            a("v_cvt_pk_bf16_f32 %s, %s, %s" % (vr(A2), vr(D0), vr(D0 + 1)))
            a("v_cvt_pk_bf16_f32 %s, %s, %s" % (vr(A2 + 1), vr(D0 + 2), vr(D0 + 3)))
            a("v_cvt_pk_bf16_f32 %s, %s, %s" % (vr(A2 + 2), vr(D1), vr(D1 + 1)))
            a("v_cvt_pk_bf16_f32 %s, %s, %s" % (vr(A2 + 3), vr(D1 + 2), vr(D1 + 3)))
            ps = [p for p in pairs if p[0] == aa]
            for q, (_, Tt, ad) in enumerate(ps):
                a("v_mfma_f32_16x16x32_bf16 %s, %s, %s, 0" % (vr(OUT + 4 * q, 4), vr(A2, 4), vr(acc(5 + Tt, 0), 4)))
            a("v_mfma_f32_16x16x32_bf16 %s, %s, %s, 0" % (vr(OUT + 12, 4), vr(A2, 4), vr(ONES, 4)))
            for q, (_, Tt, ad) in enumerate(ps):
                a("ds_write_b128 %s, %s offset:%d" % (vr(ad), vr(OUT + 4 * q, 4), 32 * c))
            a("ds_write_b128 %s, %s offset:%d" % (vr(WA + 6 + aa), vr(OUT + 12, 4), 32 * c))
    a("s_waitcnt lgkmcnt(0)")
    a("s_barrier")
    make_srd(a, 40, 24, KVP_BYTES, WS_KVP)
    a("s_lshl_b32 s48, s51, 5")
    a("s_lshl_b32 s49, s52, 3")
    a("s_add_u32 s48, s48, s49")
    a("s_mul_i32 s48, s48, 3360")
    for q in range(4):
        e = T0
        a("v_add_u32 %s, %d, v199" % (vr(e), 512 * q))
        a("v_cmp_le_u32 vcc, 840, %s" % vr(e))
        a("v_mov_b32 %s, %d" % (vr(T0 + 1), 13440 - 840 * 16))
        a("v_cndmask_b32 %s, 0, %s, vcc" % (vr(T0 + 1), vr(T0 + 1)))
        a("v_lshl_add_u32 %s, %s, 4, %s" % (vr(T0 + 1), vr(e), vr(T0 + 1)))
        if q == 3:
            a("v_cmp_gt_u32 vcc, 1680, %s" % vr(e))
            a("v_cndmask_b32 %s, 0, %s, vcc" % (vr(T0 + 1), vr(T0 + 1)))
        a("v_add_u32 %s, %d, %s" % (vr(T0 + 4), 4 * 13440, vr(T0 + 1)))
        for wm in range(4):
            a("ds_read_b128 %s, %s offset:%d" % (vr(204 + 4 * wm, 4), vr(T0 + 1 if wm < 2 else T0 + 4), (wm & 1) * 2 * 13440))
        for r in range(4):
            a("v_add_f32 %s, %s, %s" % (vr(204 + r), vr(204 + r), vr(208 + r)))
            a("v_add_f32 %s, %s, %s" % (vr(212 + r), vr(212 + r), vr(216 + r)))
        for r in range(4):
            a("v_add_f32 %s, %s, %s" % (vr(204 + r), vr(204 + r), vr(212 + r)))
        a("v_lshlrev_b32 %s, 4, %s" % (vr(T0 + 2), vr(e)))
        if q == 3:
            a("v_mov_b32 %s, 0x7fffff00" % vr(T0 + 3))
            a("v_cndmask_b32 %s, %s, %s, vcc" % (vr(T0 + 2), vr(T0 + 3), vr(T0 + 2)))
        a("buffer_store_dwordx4 v[204:207], %s, s[40:43], s48 offen" % vr(T0 + 2))


def gen_k1(a):
    a.label("k1_kernel")
    load_kernargs(a)
    a("s_cmp_ge_u32 s2, 224")
    a("s_cbranch_scc1 Lk1_exit")
    a("s_waitcnt lgkmcnt(0)")
    a("s_cmp_ge_u32 s2, 192")
    a("s_cbranch_scc1 Lk1_q")
    a("s_cmp_ge_u32 s2, 128")
    a("s_cbranch_scc1 Lk1_kv")
    a("s_lshr_b32 s51, s2, 4")
    a("s_and_b32 s52, s2, 15")
    k1_path(a, "GU")
    a.label("Lk1_kv")
    a.hist = []
    a("s_sub_u32 s48, s2, 128")
    a("s_lshr_b32 s51, s48, 2")
    a("s_and_b32 s52, s48, 3")
    k1_path(a, "KV")
    a.label("Lk1_q")
    a.hist = []
    a("s_sub_u32 s48, s2, 192")
    a("s_lshr_b32 s51, s48, 1")
    a("s_and_b32 s52, s48, 1")
    k1_path(a, "Q")
    a.label("Lk1_exit")
    a("s_endpgm")


def gen_k15(a):
    a.label("k15_kernel")
    load_kernargs(a)
    a("s_cmp_ge_u32 s2, 256")
    a("s_cbranch_scc1 Lk15_exit")
    a("s_waitcnt lgkmcnt(0)")
    a("s_and_b32 s51, s2, 31")
    a("s_lshr_b32 s52, s2, 5")
    make_srd(a, 28, 24, KVP_BYTES, WS_KVP)
    make_srd(a, 32, 24, PHIQ_BYTES, WS_PHIQ)
    make_srd(a, 36, 24, O_BYTES, WS_O)
    VL, VW = 60, 61
    a("v_and_b32 %s, 63, v0" % vr(VL))
    a("v_lshrrev_b32 %s, 6, v0" % vr(VW))
    a("v_and_b32 v1, 15, %s" % vr(VL))
    a("v_lshl_add_u32 v1, %s, 6, v1" % vr(VW))
    a("s_lshl_b32 s48, s52, 8")
    a("v_add_u32 v1, s48, v1")
    a("v_mov_b32 v62, v1")
    a("s_movk_i32 s49, 2560")
    a("v_mul_lo_u32 v2, v1, s49")
    a("v_lshrrev_b32 v3, 4, %s" % vr(VL))
    a("s_mul_i32 s48, s51, 80")
    a("v_lshl_add_u32 v2, v3, 4, v2")
    a("v_add_u32 v2, s48, v2")
    BF = 64
    a("s_mov_b32 s49, 0")
    for i in range(4):
        for c in range(2):
            a("buffer_load_dwordx4 %s, v2, s[32:35], s49 offen offset:%d" % (vr(BF + (i * 2 + c) * 4, 4), c * 64))
        if i < 3:
            a("s_add_u32 s49, s49, %d" % (16 * 2560))
    for r in range(4):
        a("v_mov_b32 %s, 0" % vr(4 + r))
    a("v_lshlrev_b32 v8, 4, v0")
    a("ds_write_b128 v8, v[4:7]")
    a("s_mul_i32 s48, s51, 3360")
    a("v_add_u32 v9, s48, v8")
    a("v_cmp_gt_u32 vcc, 210, v0")
    a("v_mov_b32 v10, 0x7fffff00")
    a("v_cndmask_b32 v9, v10, v9, vcc")
    a("s_mov_b32 s49, 0")
    for mt in range(16):
        a("buffer_load_dwordx4 %s, v9, s[28:31], s49 offen" % vr(96 + 4 * mt, 4))
        if mt < 15:
            a("s_add_u32 s49, s49, %d" % (32 * 3360))
    for st in (8, 4, 2, 1):
        for m in range(st):
            for r in range(4):
                a("v_add_f32 %s, %s, %s" % (vr(96 + 4 * m + r), vr(96 + 4 * m + r), vr(96 + 4 * (m + st) + r)))
    a("v_cvt_pk_bf16_f32 v12, v96, v97")
    a("v_cvt_pk_bf16_f32 v13, v98, v99")
    a("s_mov_b32 s48, 0x1999999a")
    a("v_mul_hi_u32 v14, v0, s48")
    a("v_mul_u32_u24 v15, 10, v14")
    a("v_sub_u32 v15, v0, v15")
    a("v_lshlrev_b32 v15, 3, v15")
    a("v_lshl_add_u32 v15, v14, 7, v15")
    a("v_mov_b32 v16, 4096")
    a("v_cndmask_b32 v15, v16, v15, vcc")
    a("s_waitcnt lgkmcnt(0)")
    a("s_barrier")
    a("ds_write_b64 v15, v[12:13]")
    a("s_waitcnt lgkmcnt(0)")
    a("s_barrier")
    a("v_and_b32 v1, 15, %s" % vr(VL))
    a("v_lshlrev_b32 v4, 4, v3")
    a("v_lshl_add_u32 v5, v1, 7, v4")
    AFr = 16
    for c in range(2):
        a("ds_read_b128 %s, v5 offset:%d" % (vr(AFr + 4 * c, 4), c * 64))
        a("ds_read_b128 %s, v5 offset:%d" % (vr(AFr + 8 + 4 * c, 4), 2048 + c * 64))
        a("ds_read_b128 %s, v4 offset:%d" % (vr(AFr + 16 + 4 * c, 4), 20 * 128 + c * 64))
    a("s_movk_i32 s49, 1280")
    a("v_mul_lo_u32 v6, v62, s49")
    a("s_mul_i32 s48, s51, 40")
    a("v_lshl_add_u32 v6, v3, 3, v6")
    a("v_add_u32 v6, s48, v6")
    a("v_cmp_gt_u32 vcc, 16, %s" % vr(VL))
    a("v_mov_b32 v10, 0x7fffff00")
    a("v_cndmask_b32 v7, v10, v6, vcc")
    a("s_mov_b32 s49, 0")
    N0, N1, DN = 40, 44, 48
    for i in range(4):
        for (dst, af) in ((N0, AFr), (N1, AFr + 8), (DN, AFr + 16)):
            a("v_mfma_f32_16x16x32_bf16 %s, %s, %s, 0" % (vr(dst, 4), vr(af, 4), vr(BF + (2 * i) * 4, 4)))
            a("v_mfma_f32_16x16x32_bf16 %s, %s, %s, %s" % (vr(dst, 4), vr(af + 4, 4), vr(BF + (2 * i + 1) * 4, 4), vr(dst, 4)))
        rnd2(a, N0, N0 + 1, 52)
        rnd2(a, N0 + 2, N0 + 3, 52)
        rnd2(a, N1, N1 + 1, 52)
        rnd2(a, N1 + 2, N1 + 3, 52)
        a("v_cvt_pk_bf16_f32 v52, %s, %s" % (vr(DN), vr(DN)))
        a("v_lshlrev_b32 v52, 16, v52")
        a("v_add_f32 v52, 0x%x, v52" % f2u(1e-6))
        a("v_cvt_pk_bf16_f32 v52, v52, v52")
        a("v_lshlrev_b32 v52, 16, v52")
        a("v_rcp_f32 v52, v52")
        for r in range(4):
            a("v_mul_f32 %s, %s, v52" % (vr(N0 + r), vr(N0 + r)))
            a("v_mul_f32 %s, %s, v52" % (vr(N1 + r), vr(N1 + r)))
        a("v_cvt_pk_bf16_f32 v54, %s, %s" % (vr(N0), vr(N0 + 1)))
        a("v_cvt_pk_bf16_f32 v55, %s, %s" % (vr(N0 + 2), vr(N0 + 3)))
        a("v_cvt_pk_bf16_f32 v56, %s, %s" % (vr(N1), vr(N1 + 1)))
        a("v_cvt_pk_bf16_f32 v57, %s, %s" % (vr(N1 + 2), vr(N1 + 3)))
        a("buffer_store_dwordx2 v[54:55], v6, s[36:39], s49 offen")
        a("buffer_store_dwordx2 v[56:57], v7, s[36:39], s49 offen offset:32")
        if i < 3:
            a("s_add_u32 s49, s49, %d" % (16 * 1280))
    a.label("Lk15_exit")
    a("s_endpgm")


NS2 = 4
K2_LDS = 81920


def gen_k2(a):
    a.label("k2_kernel")
    load_kernargs(a)
    a("s_cmp_ge_u32 s2, 256")
    a("s_cbranch_scc1 Lk2_exit")
    a("s_waitcnt lgkmcnt(0)")
    a("s_and_b32 s51, s2, 31")
    a("s_lshr_b32 s52, s2, 5")
    make_srd(a, 28, 24, H_BYTES, WS_H)
    make_srd(a, 32, 24, O_BYTES, WS_O)
    make_srd(a, 36, 18, 1536 * 1280)
    make_srd(a, 40, 10, 640 * 1280)
    ACC = 0
    XF = 80
    WF = 144
    VH, VO = 164, 165
    VWD = 166
    VT = 171
    VL, VW = 172, 173
    T0 = 174
    a("v_mov_b32 v190, v0")
    a("v_and_b32 %s, 63, v0" % vr(VL))
    a("v_lshrrev_b32 %s, 6, v0" % vr(VW))
    a("v_readfirstlane_b32 s47, %s" % vr(VW))
    a("s_mul_i32 s46, s47, %d" % (NS2 * 5120))
    a("v_and_b32 %s, 15, %s" % (vr(T0), vr(VL)))
    a("s_lshl_b32 s48, s51, 6")
    a("v_add_u32 %s, s48, %s" % (vr(T0 + 1), vr(T0)))
    a("v_lshrrev_b32 %s, 4, %s" % (vr(T0 + 2), vr(VL)))
    a("v_lshlrev_b32 %s, 4, %s" % (vr(T0 + 3), vr(T0 + 2)))
    a("v_lshl_add_u32 %s, %s, 6, %s" % (vr(T0 + 3), vr(VW), vr(T0 + 3)))
    a("s_movk_i32 s49, 3072")
    a("v_mul_lo_u32 %s, %s, s49" % (vr(VH), vr(T0 + 1)))
    a("v_add_u32 %s, %s, %s" % (vr(VH), vr(VH), vr(T0 + 3)))
    a("s_movk_i32 s49, 1280")
    a("v_mul_lo_u32 %s, %s, s49" % (vr(VO), vr(T0 + 1)))
    a("v_add_u32 %s, %s, %s" % (vr(VO), vr(VO), vr(T0 + 3)))
    a("s_mul_i32 s48, s52, 160")
    a("s_mov_b32 s49, 0x1999999a")
    for q in range(5):
        a("v_add_u32 %s, %d, %s" % (vr(T0 + 4), 64 * q, vr(VL)))
        a("v_mul_hi_u32 %s, %s, s49" % (vr(T0 + 5), vr(T0 + 4)))
        a("v_mul_u32_u24 %s, 10, %s" % (vr(T0 + 6), vr(T0 + 5)))
        a("v_sub_u32 %s, %s, %s" % (vr(T0 + 6), vr(T0 + 4), vr(T0 + 6)))
        a("v_lshl_add_u32 %s, %s, 5, %s" % (vr(T0 + 5), vr(VW), vr(T0 + 5)))
        a("v_mul_u32_u24 %s, 1280, %s" % (vr(T0 + 5), vr(T0 + 5)))
        a("v_lshl_add_u32 %s, %s, 4, %s" % (vr(T0 + 5), vr(T0 + 6), vr(T0 + 5)))
        a("v_add_u32 %s, s48, %s" % (vr(VWD + q), vr(T0 + 5)))
    a("v_lshrrev_b32 %s, 2, %s" % (vr(T0 + 4), vr(T0)))
    a("v_lshl_add_u32 %s, %s, 3, %s" % (vr(T0 + 4), vr(T0 + 2), vr(T0 + 4)))
    a("v_mul_u32_u24 %s, 160, %s" % (vr(T0 + 4), vr(T0 + 4)))
    a("v_and_b32 %s, 3, %s" % (vr(T0 + 5), vr(T0)))
    a("v_lshl_add_u32 %s, %s, 3, %s" % (vr(T0 + 4), vr(T0 + 5), vr(T0 + 4)))
    a("v_add_u32 %s, s46, %s" % (vr(VT), vr(T0 + 4)))
    for r in range(80):
        a("v_mov_b32 %s, 0" % vr(ACC + r))

    NSTEP = 17

    def loads(s):
        buf = s % NS2
        if s < 12:
            srdA, va, rowb, srdW, j = 28, VH, 3072, 36, s
        else:
            srdA, va, rowb, srdW, j = 32, VO, 1280, 40, s - 12
        for i in range(4):
            a("s_mov_b32 s48, %d" % (i * 16 * rowb + j * 256))
            a("buffer_load_dwordx4 %s, %s, s[%d:%d], s48 offen" % (vr(XF + buf * 16 + 4 * i, 4), vr(va), srdA, srdA + 3))
        a("s_mov_b32 s48, %d" % (j * 128 * 1280))
        for q in range(5):
            a("s_add_u32 m0, s46, %d" % (buf * 5120 + q * 1024))
            a("buffer_load_dwordx4 %s, s[%d:%d], s48 offen lds" % (vr(VWD + q), srdW, srdW + 3))

    a.auto = False
    for s in range(NS2):
        loads(s)
    for s in range(NSTEP):
        buf = s % NS2
        rem = min(NSTEP - 1, s + NS2 - 1) - s
        a("s_waitcnt vmcnt(%d)" % (9 * rem))
        a.auto = True
        a.vm = []
        for t in range(5):
            for h in range(2):
                a("ds_read_b64_tr_b16 %s, %s offset:%d" % (vr(WF + 4 * t + 2 * h, 2), vr(VT), buf * 5120 + t * 32 + h * 640))
        for t in range(5):
            for i in range(4):
                ac = ACC + (t * 4 + i) * 4
                a("v_mfma_f32_16x16x32_bf16 %s, %s, %s, %s" % (vr(ac, 4), vr(WF + 4 * t, 4), vr(XF + buf * 16 + 4 * i, 4), vr(ac, 4)))
        a.auto = False
        if s + NS2 < NSTEP:
            loads(s + NS2)
    a.auto = True
    a.vm = []
    a("s_barrier")
    a("v_mul_u32_u24 %s, 320, %s" % (vr(T0 + 4), vr(T0)))
    a("v_lshl_add_u32 %s, %s, 4, %s" % (vr(T0 + 4), vr(T0 + 2), vr(T0 + 4)))
    a("v_mul_u32_u24 %s, 20480, %s" % (vr(T0 + 5), vr(VW)))
    a("v_add_u32 %s, %s, %s" % (vr(T0 + 4), vr(T0 + 4), vr(T0 + 5)))
    for t in range(5):
        for i in range(4):
            ac = ACC + (t * 4 + i) * 4
            a("ds_write_b128 %s, %s offset:%d" % (vr(T0 + 4), vr(ac, 4), i * 16 * 320 + t * 64))
    a("s_waitcnt lgkmcnt(0)")
    a("s_barrier")
    make_srd(a, 28, 4, 2048 * 1280)
    make_srd(a, 32, 20, 2048 * 1280)
    a("s_mov_b32 s49, 0x1999999a")
    a("s_lshl_b32 s48, s51, 6")
    a("s_mul_i32 s50, s52, 160")
    for q in range(3):
        a("v_add_u32 %s, %d, v190" % (vr(T0), 256 * q))
        a("v_mul_hi_u32 %s, %s, s49" % (vr(T0 + 1), vr(T0)))
        a("v_mul_u32_u24 %s, 10, %s" % (vr(T0 + 2), vr(T0 + 1)))
        a("v_sub_u32 %s, %s, %s" % (vr(T0 + 2), vr(T0), vr(T0 + 2)))
        a("v_mul_u32_u24 %s, 320, %s" % (vr(T0 + 3), vr(T0 + 1)))
        a("v_lshl_add_u32 %s, %s, 5, %s" % (vr(T0 + 3), vr(T0 + 2), vr(T0 + 3)))
        a("v_add_u32 %s, s48, %s" % (vr(T0 + 1), vr(T0 + 1)))
        a("v_mul_u32_u24 %s, 1280, %s" % (vr(T0 + 1), vr(T0 + 1)))
        a("v_lshl_add_u32 %s, %s, 4, %s" % (vr(T0 + 1), vr(T0 + 2), vr(T0 + 1)))
        a("v_add_u32 %s, s50, %s" % (vr(T0 + 1), vr(T0 + 1)))
        if q == 2:
            a("v_cmp_gt_u32 vcc, 640, %s" % vr(T0))
            a("v_cndmask_b32 %s, 0, %s, vcc" % (vr(T0 + 3), vr(T0 + 3)))
            a("v_mov_b32 %s, 0x7fffff00" % vr(T0 + 4))
            a("v_cndmask_b32 %s, %s, %s, vcc" % (vr(T0 + 1), vr(T0 + 4), vr(T0 + 1)))
        a("buffer_load_dwordx4 v[40:43], %s, s[28:31], 0 offen" % vr(T0 + 1))
        for w in range(4):
            a("ds_read_b128 %s, %s offset:%d" % (vr(8 * w, 4), vr(T0 + 3), w * 20480))
            a("ds_read_b128 %s, %s offset:%d" % (vr(8 * w + 4, 4), vr(T0 + 3), w * 20480 + 16))
        for r in range(8):
            a("v_add_f32 %s, %s, %s" % (vr(r), vr(r), vr(8 + r)))
            a("v_add_f32 %s, %s, %s" % (vr(16 + r), vr(16 + r), vr(24 + r)))
        for r in range(8):
            a("v_add_f32 %s, %s, %s" % (vr(r), vr(r), vr(16 + r)))
        for r in range(4):
            a("v_lshlrev_b32 %s, 16, %s" % (vr(44), vr(40 + r)))
            a("v_and_b32 %s, 0xffff0000, %s" % (vr(45), vr(40 + r)))
            a("v_add_f32 %s, %s, %s" % (vr(2 * r), vr(2 * r), vr(44)))
            a("v_add_f32 %s, %s, %s" % (vr(2 * r + 1), vr(2 * r + 1), vr(45)))
            a("v_cvt_pk_bf16_f32 %s, %s, %s" % (vr(48 + r), vr(2 * r), vr(2 * r + 1)))
        a("buffer_store_dwordx4 v[48:51], %s, s[32:35], 0 offen" % vr(T0 + 1))
    a.label("Lk2_exit")
    a("s_endpgm")


def kd(name, vgpr):
    return """.amdhsa_kernel %s
  .amdhsa_next_free_vgpr %d
  .amdhsa_next_free_sgpr 96
  .amdhsa_accum_offset %d
  .amdhsa_group_segment_fixed_size 0
  .amdhsa_kernarg_size 88
  .amdhsa_user_sgpr_count 2
  .amdhsa_user_sgpr_kernarg_segment_ptr 1
  .amdhsa_system_sgpr_workgroup_id_x 1
  .amdhsa_float_denorm_mode_32 3
.end_amdhsa_kernel
""" % (name, vgpr, (vgpr + 3) // 4 * 4)


def main():
    out = []
    out.append("; @launch kernel=k1_kernel grid=(224,1,1) block=(512,1,1) lds=%d" % K1_LDS)
    out.append("; @launch kernel=k15_kernel grid=(256,1,1) block=(256,1,1) lds=4160")
    out.append("; @launch kernel=k2_kernel grid=(256,1,1) block=(256,1,1) lds=%d" % K2_LDS)
    out.append('.amdgcn_target "amdgcn-amd-amdhsa--gfx950"')
    out.append(".text")
    for nm, g in (("k1_kernel", gen_k1), ("k15_kernel", gen_k15), ("k2_kernel", gen_k2)):
        a = Asm()
        g(a)
        out.append(".globl %s" % nm)
        out.append(".p2align 8")
        out.append(".type %s,@function" % nm)
        out.append(a.text())
    out.append('.section .rodata,"a"')
    for nm, v in (("k1_kernel", 256), ("k15_kernel", 160), ("k2_kernel", 192)):
        out.append(".p2align 6")
        out.append(kd(nm, v))
    path = "cdna_kernels/%s.s" % NAME
    open(path, "w").write("\n".join(out))
    print("wrote", path, sum(len(x) for x in out))


if __name__ == "__main__":
    main()
```

```python
import sys, os, struct
sys.path.insert(0, os.path.dirname(os.path.abspath(__file__)))
from asmdsl import Asm, vr, sr

FL = set(os.environ.get("GENFLAGS", "").split(","))
NAME = "parallel_sum__linear_kernel_hedgehog__glu_gated_geglu__prompt"

WS_HF = 0x000000
WS_PQF = 0x600000
WS_OF = 0xB00000
WS_W2F = 0xE00000
WS_KVA = 0x1100000
WS_ST = 0x1120000
WS_CS = 0x1128000
WS_FLG = 0x1130000
HF_BYTES = 128 * 48 * 1024
PQF_BYTES = 128 * 40 * 1024
OF_BYTES = 128 * 24 * 1024
W2F_BYTES = 8 * 72 * 5 * 1024
KVA_BYTES = 32 * 840 * 4
ST_BYTES = 2048 * 8
CS_BYTES = 4992 * 4

WSLOT = 24576
LDS_X = 4 * WSLOT
LDS_WPHI = LDS_X + 49152
LDS_ZERO = LDS_WPHI + 12800
LDS_DUMMY = LDS_ZERO + 64
K1_LDS = 163840
LOG2E = 1.4426950408889634
NPROD = 220


def f2u(x):
    return struct.unpack("<I", struct.pack("<f", x))[0]


def stamp(a, k):
    if "ts" not in FL:
        return
    a("s_waitcnt lgkmcnt(0)")
    a("s_memtime s[%d:%d]" % (72 + 2 * k, 73 + 2 * k))
    a("s_waitcnt lgkmcnt(0)")


def dump_stamps(a, n, base):
    if "ts" not in FL:
        return
    stamp(a, n - 1)
    a("s_add_u32 s56, s24, 0x%x" % base)
    a("s_addc_u32 s57, s25, 0")
    a("s_and_b32 s57, s57, 0xffff")
    a("s_mov_b32 s58, 0x10000")
    a("s_mov_b32 s59, 0x00020000")
    a("s_cmp_lg_u32 s47, 0")
    lab = "Lts%d" % len(a.lines)
    a("s_cbranch_scc1 %s" % lab)
    a("s_lshl_b32 s48, s2, 7")
    a("v_mov_b32 v1, s48")
    a("s_mov_b64 exec, 1")
    for k in range(n):
        a("v_mov_b32 v2, s%d" % (72 + 2 * k))
        a("v_mov_b32 v3, s%d" % (73 + 2 * k))
        a("buffer_store_dwordx2 v[2:3], v1, s[56:59], 0 offen offset:%d" % (8 * k))
    a("s_mov_b64 exec, -1")
    a.label(lab)


def load_kernargs(a):
    a("s_load_dwordx16 s[4:19], s[0:1], 0")
    a("s_load_dwordx4 s[20:23], s[0:1], 64")
    a("s_load_dwordx2 s[24:25], s[0:1], 80")


def make_srd(a, d, base, nbytes, off=0):
    if off:
        a("s_add_u32 s%d, s%d, 0x%x" % (d, base, off))
        a("s_addc_u32 s%d, s%d, 0" % (d + 1, base + 1))
        a("s_and_b32 s%d, s%d, 0xffff" % (d + 1, d + 1))
    else:
        a("s_mov_b32 s%d, s%d" % (d, base))
        a("s_and_b32 s%d, s%d, 0xffff" % (d + 1, base + 1))
    a("s_mov_b32 s%d, 0x%x" % (d + 2, nbytes))
    a("s_mov_b32 s%d, 0x00020000" % (d + 3))


def swap_add(a, x, t1, t2, which):
    a("v_mov_b32 %s, %s" % (vr(t1), vr(x)))
    a("v_mov_b32 %s, %s" % (vr(t2), vr(x)))
    a("v_permlane%d_swap_b32 %s, %s" % (which, vr(t1), vr(t2)))
    a("v_add_f32 %s, %s, %s" % (vr(x), vr(t1), vr(t2)))


def rnd2(a, x, y, t):
    a("v_cvt_pk_bf16_f32 %s, %s, %s" % (vr(t), vr(x), vr(y)))
    a("v_lshlrev_b32 %s, 16, %s" % (vr(x), vr(t)))
    a("v_and_b32 %s, 0xffff0000, %s" % (vr(y), vr(t)))


def split3(a, c, d0, t1, t2, t3):
    a("v_cvt_pk_bf16_f32 %s, %s, %s" % (vr(t1), vr(c), vr(c)))
    a("v_lshlrev_b32 %s, 16, %s" % (vr(t3), vr(t1)))
    a("v_sub_f32 %s, %s, %s" % (vr(c), vr(c), vr(t3)))
    a("v_cvt_pk_bf16_f32 %s, %s, %s" % (vr(t2), vr(c), vr(c)))
    a("v_lshlrev_b32 %s, 16, %s" % (vr(t3), vr(t2)))
    a("v_sub_f32 %s, %s, %s" % (vr(c), vr(c), vr(t3)))
    a("v_cvt_pk_bf16_f32 %s, %s, %s" % (vr(t3), vr(c), vr(c)))
    a("v_and_b32 %s, 0xffff, %s" % (vr(t1), vr(t1)))
    a("v_lshl_or_b32 %s, %s, 16, %s" % (vr(t1), vr(t2), vr(t1)))
    a("v_and_b32 %s, 0xffff, %s" % (vr(t3), vr(t3)))
    a("v_cndmask_b32 %s, 0, %s, vcc" % (vr(d0), vr(t1)))
    a("v_cndmask_b32 %s, 0, %s, vcc" % (vr(d0 + 1), vr(t3)))
    a("v_mov_b32 %s, 0" % vr(d0 + 2))
    a("v_mov_b32 %s, 0" % vr(d0 + 3))


class Rec:
    def __init__(self):
        self.l = []

    def __call__(self, t):
        self.l.append(t)

    def comment(self, t):
        pass


def merge(a, *recs):
    ls = [list(r.l) for r in recs]
    n = max(len(l) for l in ls)
    idx = [0] * len(ls)
    for k in range(1, n + 1):
        for q, l in enumerate(ls):
            tgt = (len(l) * k + n - 1) // n
            while idx[q] < min(tgt, len(l)):
                a(l[idx[q]])
                idx[q] += 1


def mfma(a, d, A, B, C):
    a("v_mfma_f32_16x16x32_bf16 %s, %s, %s, %s" % (vr(d, 4), vr(A, 4), vr(B, 4), "0" if C is None else vr(C, 4)))


ACC = 0
FB = 96
VOFFW = 192
VOFFX = 195
VXB = 197
VWB = 199
VL = 207
VW = 208
VTID = 209
T0 = 210
RS = 230
MF = 238


def signal(a, L, target_srd):
    a("s_cmp_ge_u32 s2, %d" % NPROD)
    a("s_cbranch_scc1 %s" % L)
    a("s_cmp_lg_u32 s47, 0")
    a("s_cbranch_scc1 %s" % L)
    a("v_mov_b32 %s, 1" % vr(T0))
    a("v_mov_b32 %s, 0" % vr(T0 + 1))
    a("s_mov_b64 exec, 1")
    a("buffer_atomic_add %s, %s, s[%d:%d], 0 offen sc1" % (vr(T0), vr(T0 + 1), target_srd, target_srd + 3))
    a("s_mov_b64 exec, -1")
    a.label(L)
    a.hist = []


def prepass(a, L):
    make_srd(a, 60, 22, 256)
    a("s_cmp_lg_u32 s2, %d" % NPROD)
    a("s_cbranch_scc1 %spp_nf" % L)
    make_srd(a, 56, 24, 4096, WS_FLG)
    a("v_lshlrev_b32 v1, 4, %s" % vr(VTID))
    for r in range(4):
        a("v_mov_b32 %s, 0" % vr(8 + r))
    a("buffer_store_dwordx4 v[8:11], v1, s[56:59], 0 offen")
    a.label(L + "pp_nf")
    a.hist = []
    a("s_cmp_ge_u32 s2, %d" % NPROD)
    a("s_cbranch_scc1 %spp_done" % L)
    a("s_cmp_ge_u32 s2, 206")
    a("s_cbranch_scc1 %spp_zero" % L)
    a("s_cmp_ge_u32 s2, 78")
    a("s_cbranch_scc1 %spp_stats" % L)
    make_srd(a, 56, 6, 640 * 3840)
    a("s_movk_i32 s54, 3840")
    a("s_lshl_b32 s55, s2, 7")
    a("s_cmp_lt_u32 s2, 30")
    a("s_cbranch_scc1 %spp_cs" % L)
    make_srd(a, 56, 14, 640 * 3072)
    a("s_movk_i32 s54, 3072")
    a("s_sub_u32 s55, s55, %d" % (30 * 128))
    a("s_cmp_lt_u32 s2, 54")
    a("s_cbranch_scc1 %spp_cs" % L)
    make_srd(a, 56, 16, 640 * 3072)
    a("s_sub_u32 s55, s55, %d" % (24 * 128))
    a.label(L + "pp_cs")
    a.hist = []
    a("v_and_b32 v1, 31, %s" % vr(VTID))
    a("v_lshrrev_b32 v2, 5, %s" % vr(VTID))
    a("v_mul_lo_u32 v2, v2, s54")
    a("v_lshl_add_u32 v2, v1, 2, v2")
    a("v_add_u32 v2, s55, v2")
    a("s_lshl_b32 s54, s54, 4")
    a("s_mov_b32 s55, 0")
    for i in range(40):
        a("buffer_load_dword %s, v2, s[56:59], s55 offen" % vr(8 + i))
        if i < 39:
            a("s_add_u32 s55, s55, s54")
    a("v_mov_b32 v4, 0")
    a("v_mov_b32 v5, 0")
    for i in range(40):
        a("v_lshlrev_b32 v6, 16, %s" % vr(8 + i))
        a("v_and_b32 v7, 0xffff0000, %s" % vr(8 + i))
        a("v_pk_add_f32 v[4:5], v[4:5], v[6:7]")
    swap_add(a, 4, 6, 7, 32)
    swap_add(a, 5, 6, 7, 32)
    a("v_lshlrev_b32 v1, 3, v1")
    a("v_lshl_add_u32 v3, %s, 8, v1" % vr(VW))
    a("v_add_u32 v3, %d, v3" % (3 * WSLOT))
    a("ds_write_b64 v3, v[4:5]")
    a("s_waitcnt lgkmcnt(0)")
    a("s_barrier")
    a("v_add_u32 v3, %d, v1" % (3 * WSLOT))
    for w in range(8):
        a("ds_read_b64 %s, v3 offset:%d" % (vr(8 + 2 * w, 2), w * 256))
    for w in range(1, 8):
        a("v_pk_add_f32 v[8:9], v[8:9], %s" % vr(8 + 2 * w, 2))
    make_srd(a, 56, 24, CS_BYTES, WS_CS)
    a("s_lshl_b32 s55, s2, 8")
    a("v_add_u32 v1, s55, v1")
    a("v_mov_b32 v3, 0x7fffff00")
    a("v_cmp_gt_u32 vcc, 32, %s" % vr(VTID))
    a("v_cndmask_b32 v1, v3, v1, vcc")
    a("buffer_store_dwordx2 v[8:9], v1, s[56:59], 0 offen sc1")
    a("s_branch %spp_sig" % L)
    a.label(L + "pp_stats")
    a.hist = []
    a("s_sub_u32 s54, s2, 78")
    a("s_lshl_b32 s54, s54, 4")
    a("v_lshrrev_b32 v1, 5, %s" % vr(VTID))
    a("v_add_u32 v1, s54, v1")
    a("v_and_b32 v2, 31, %s" % vr(VTID))
    a("v_mul_u32_u24 v3, 40, v2")
    a("s_movk_i32 s55, 1280")
    a("v_mul_lo_u32 v4, v1, s55")
    a("v_add_u32 v3, v3, v4")
    a("buffer_load_dwordx4 v[8:11], v3, s[28:31], 0 offen")
    a("buffer_load_dwordx4 v[12:15], v3, s[28:31], 0 offen offset:16")
    a("buffer_load_dwordx2 v[16:17], v3, s[28:31], 0 offen offset:32")
    for r in range(4):
        a("v_mov_b32 %s, 0" % vr(20 + r))
    for i in range(10):
        a("v_lshlrev_b32 v6, 16, %s" % vr(8 + i))
        a("v_and_b32 v7, 0xffff0000, %s" % vr(8 + i))
        a("v_pk_add_f32 v[20:21], v[20:21], v[6:7]")
        a("v_pk_fma_f32 v[22:23], v[6:7], v[6:7], v[22:23]")
    a("v_add_f32 v20, v20, v21")
    a("v_add_f32 v22, v22, v23")
    for ro in (8, 4, 2, 1):
        a("v_add_f32_dpp v20, v20, v20 row_ror:%d row_mask:0xf bank_mask:0xf" % ro)
        a("v_add_f32_dpp v22, v22, v22 row_ror:%d row_mask:0xf bank_mask:0xf" % ro)
    swap_add(a, 20, 6, 7, 16)
    swap_add(a, 22, 6, 7, 16)
    a("s_mov_b32 s55, 0x%x" % f2u(1.0 / 640.0))
    a("v_mul_f32 v20, s55, v20")
    a("v_mul_f32 v22, s55, v22")
    a("v_fma_f32 v22, -v20, v20, v22")
    a("v_max_f32 v22, 0, v22")
    a("v_cvt_pk_bf16_f32 v6, v20, v22")
    a("v_lshlrev_b32 v9, 16, v6")
    a("v_and_b32 v7, 0xffff0000, v6")
    a("v_add_f32 v7, 0x%x, v7" % f2u(1e-5))
    a("v_cvt_pk_bf16_f32 v7, v7, v7")
    a("v_lshlrev_b32 v7, 16, v7")
    a("v_sqrt_f32 v7, v7")
    a("v_cvt_pk_bf16_f32 v7, v7, v7")
    a("v_lshlrev_b32 v7, 16, v7")
    a("v_rcp_f32 v8, v7")
    make_srd(a, 56, 24, ST_BYTES, WS_ST)
    a("v_lshlrev_b32 v1, 3, v1")
    a("v_mov_b32 v3, 0x7fffff00")
    a("v_cmp_eq_u32 vcc, 0, v2")
    a("v_cndmask_b32 v1, v3, v1, vcc")
    a("buffer_store_dwordx2 v[8:9], v1, s[56:59], 0 offen sc1")
    a("s_branch %spp_sig" % L)
    a.label(L + "pp_zero")
    a.hist = []
    make_srd(a, 56, 24, KVA_BYTES, WS_KVA)
    a("s_sub_u32 s54, s2, 206")
    a("s_mul_i32 s54, s54, 7680")
    a("v_lshlrev_b32 v1, 4, %s" % vr(VTID))
    a("v_add_u32 v1, s54, v1")
    a("v_mov_b32 v3, 0x7fffff00")
    a("v_cmp_gt_u32 vcc, 480, %s" % vr(VTID))
    a("v_cndmask_b32 v1, v3, v1, vcc")
    for r in range(4):
        a("v_mov_b32 %s, 0" % vr(8 + r))
    a("buffer_store_dwordx4 v[8:11], v1, s[56:59], 0 offen sc1")
    a.label(L + "pp_sig")
    a.label(L + "pp_done")
    a.hist = []
    a.vm = []
    a.lg = []


def wait_flag(a, L, srd, off, target):
    a("v_mov_b32 %s, %d" % (vr(T0), off))
    a("s_mov_b32 s49, 0")
    a.label(L)
    a.hist = []
    a("buffer_load_dword %s, %s, s[%d:%d], 0 offen sc1" % (vr(T0 + 1), vr(T0), srd, srd + 3))
    a("s_waitcnt vmcnt(0)")
    a("v_readfirstlane_b32 s48, %s" % vr(T0 + 1))
    a("s_cmp_ge_u32 s48, %d" % target)
    a("s_cbranch_scc1 %s_ok" % L)
    a("s_sleep 4")
    a("s_add_u32 s49, s49, 1")
    a("s_cmp_lt_u32 s49, 0x40000")
    a("s_cbranch_scc1 %s" % L)
    a.label(L + "_ok")
    a.hist = []


def k1_path(a, T):
    NI = {"GU": 4, "KV": 2, "Q": 4}[T]
    NT = {"GU": 6, "KV": 10, "Q": 5}[T]
    HALF = {"GU": 3, "KV": 5, "Q": 5}[T]
    rowb = 3072 if T == "GU" else 3840
    L = "L%s_" % T
    nacc = NT * NI * 4

    def acc(t, i):
        return ACC + (t * NI + i) * 4

    a.comment("==== K1 path %s" % T)
    stamp(a, 0)
    a("v_mov_b32 %s, v0" % vr(VTID))
    a("v_and_b32 %s, 63, v0" % vr(VL))
    a("v_lshrrev_b32 %s, 6, v0" % vr(VW))
    a("v_readfirstlane_b32 s47, %s" % vr(VW))
    a("s_lshl_b32 s46, s47, 10")
    make_srd(a, 28, 4, 2048 * 1280)
    a("v_lshrrev_b32 %s, 3, %s" % (vr(T0), vr(VL)))
    a("v_and_b32 %s, 7, %s" % (vr(T0 + 1), vr(VL)))
    a("v_xor_b32 %s, %s, %s" % (vr(T0 + 2), vr(T0 + 1), vr(T0)))
    a("s_lshl_b32 s48, s51, 7")
    a("v_lshl_add_u32 %s, %s, 3, %s" % (vr(T0 + 3), vr(VW), vr(T0)))
    a("v_add_u32 %s, s48, %s" % (vr(T0 + 3), vr(T0 + 3)))
    a("s_movk_i32 s49, 1280")
    a("v_mul_lo_u32 %s, %s, s49" % (vr(T0 + 3), vr(T0 + 3)))
    a("v_lshl_add_u32 %s, %s, 4, %s" % (vr(VOFFX), vr(T0 + 2), vr(T0 + 3)))
    a("v_add_u32 %s, %d, %s" % (vr(VOFFX + 1), 64 * 1280, vr(VOFFX)))
    a("v_and_b32 %s, 3, %s" % (vr(T0 + 3), vr(VW)))
    a("v_bfe_u32 %s, %s, 1, 1" % (vr(T0 + 4), vr(T0)))
    a("v_and_b32 %s, 1, %s" % (vr(T0 + 5), vr(T0 + 3)))
    a("v_lshl_add_u32 %s, %s, 1, %s" % (vr(T0 + 4), vr(T0 + 5), vr(T0 + 4)))
    a("v_lshlrev_b32 %s, 1, %s" % (vr(T0 + 4), vr(T0 + 4)))
    a("v_xor_b32 %s, %s, %s" % (vr(T0 + 4), vr(T0 + 1), vr(T0 + 4)))
    a("v_lshl_add_u32 %s, %s, 3, %s" % (vr(T0 + 5), vr(T0 + 3), vr(T0)))
    a("s_movk_i32 s49, %d" % rowb)
    a("v_mul_lo_u32 %s, %s, s49" % (vr(T0 + 5), vr(T0 + 5)))
    a("v_lshl_add_u32 %s, %s, 4, %s" % (vr(T0 + 5), vr(T0 + 4), vr(T0 + 5)))
    a("v_lshrrev_b32 %s, 2, %s" % (vr(T0 + 6), vr(VW)))
    a("v_lshl_add_u32 %s, %s, 7, %s" % (vr(T0 + 5), vr(T0 + 6), vr(T0 + 5)))
    if T == "GU":
        a("s_mul_i32 s48, s52, 384")
        a("v_add_u32 %s, s48, %s" % (vr(VOFFW), vr(T0 + 5)))
        a("v_mov_b32 %s, 256" % vr(T0 + 7))
        a("v_mov_b32 %s, 0xffffff80" % vr(T0 + 8))
        a("v_cmp_eq_u32 vcc, 0, %s" % vr(T0 + 6))
        a("v_cndmask_b32 %s, %s, %s, vcc" % (vr(T0 + 7), vr(T0 + 8), vr(T0 + 7)))
        a("v_add_u32 %s, %s, %s" % (vr(VOFFW + 1), vr(T0 + 7), vr(VOFFW)))
        a("v_add_u32 %s, 128, %s" % (vr(VOFFW + 2), vr(VOFFW)))
        make_srd(a, 32, 14, 640 * 3072)
        make_srd(a, 36, 16, 640 * 3072)
        make_srd(a, 40, 14, 640 * 3072)
        a("s_cmp_lt_u32 s47, 4")
        a("s_cselect_b32 s40, s40, s36")
        a("s_cselect_b32 s41, s41, s37")
        srdw = [32, 40, 36]
    else:
        if T == "Q":
            a("s_mul_i32 s48, s52, 640")
            d1, d2 = 256, 512
            a("v_add_u32 %s, s48, %s" % (vr(VOFFW), vr(T0 + 5)))
            a("v_add_u32 %s, 256, %s" % (vr(VOFFW + 1), vr(VOFFW)))
            a("v_add_u32 %s, 512, %s" % (vr(VOFFW + 2), vr(VOFFW)))
        else:
            a("s_mul_i32 s48, s52, 320")
            a("s_and_b32 s49, s52, 1")
            a("s_lshl_b32 s49, s49, 6")
            a("s_sub_u32 s48, s48, s49")
            a("s_add_u32 s48, s48, 1280")
            a("v_add_u32 %s, s48, %s" % (vr(VOFFW), vr(T0 + 5)))
            a("v_mov_b32 %s, 256" % vr(T0 + 7))
            a("v_mov_b32 %s, %d" % (vr(T0 + 8), 1280 - 128))
            a("v_cmp_eq_u32 vcc, 0, %s" % vr(T0 + 6))
            a("v_cndmask_b32 %s, %s, %s, vcc" % (vr(T0 + 7), vr(T0 + 8), vr(T0 + 7)))
            a("v_add_u32 %s, %s, %s" % (vr(VOFFW + 1), vr(T0 + 7), vr(VOFFW)))
            a("v_add_u32 %s, %d, %s" % (vr(VOFFW + 2), 1280 + 128, vr(VOFFW)))
        make_srd(a, 32, 6, 640 * 3840)
        srdw = [32, 32, 32]
    a("s_mov_b32 s44, 0")
    a("s_mov_b32 s45, 0")

    if T != "KV":
        wmsh, wnmask = 2, 3
    else:
        wmsh, wnmask = 1, 1
    a("v_and_b32 %s, 15, %s" % (vr(T0), vr(VL)))
    a("v_lshrrev_b32 %s, 4, %s" % (vr(T0 + 1), vr(VL)))
    a("v_lshrrev_b32 %s, %d, %s" % (vr(T0 + 3), wmsh, vr(VW)))
    a("v_and_b32 %s, %d, %s" % (vr(T0 + 4), wnmask, vr(VW)))
    a("v_and_b32 %s, 7, %s" % (vr(T0 + 5), vr(T0)))
    a("v_mul_u32_u24 %s, %d, %s" % (vr(T0 + 6), NI * 2048, vr(T0 + 3)))
    a("v_lshl_add_u32 %s, %s, 7, %s" % (vr(T0 + 6), vr(T0), vr(T0 + 6)))
    a("v_add_u32 %s, %d, %s" % (vr(T0 + 6), LDS_X, vr(T0 + 6)))
    for pk in range(2):
        a("v_add_u32 %s, %d, %s" % (vr(T0 + 7), 4 * pk, vr(T0 + 1)))
        a("v_xor_b32 %s, %s, %s" % (vr(T0 + 7), vr(T0 + 7), vr(T0 + 5)))
        a("v_lshl_add_u32 %s, %s, 4, %s" % (vr(VXB + pk), vr(T0 + 7), vr(T0 + 6)))
    a("v_bfe_u32 %s, %s, 3, 1" % (vr(T0 + 5), vr(T0)))
    a("v_and_b32 %s, 1, %s" % (vr(T0 + 6), vr(T0 + 1)))
    a("v_lshl_add_u32 %s, %s, 1, %s" % (vr(T0 + 5), vr(T0 + 6), vr(T0 + 5)))
    a("v_lshrrev_b32 %s, 2, %s" % (vr(T0 + 6), vr(T0)))
    a("v_lshl_add_u32 %s, %s, 3, %s" % (vr(T0 + 6), vr(T0 + 1), vr(T0 + 6)))
    a("v_lshlrev_b32 %s, 7, %s" % (vr(T0 + 6), vr(T0 + 6)))
    a("v_and_b32 %s, 3, %s" % (vr(T0 + 7), vr(T0)))
    a("v_lshl_add_u32 %s, %s, 3, %s" % (vr(T0 + 6), vr(T0 + 7), vr(T0 + 6)))
    a("v_mul_u32_u24 %s, %d, %s" % (vr(T0 + 7), HALF, vr(T0 + 4)))
    if T == "KV":
        a("s_and_b32 s48, s52, 1")
        a("s_lshl_b32 s48, s48, 1")
        a("v_add_u32 %s, s48, %s" % (vr(T0 + 7), vr(T0 + 7)))
    for j in range(4):
        a("v_add_u32 %s, %d, %s" % (vr(T0 + 8), j, vr(T0 + 7)))
        a("v_and_b32 %s, 3, %s" % (vr(T0 + 9), vr(T0 + 8)))
        a("v_xor_b32 %s, %s, %s" % (vr(T0 + 9), vr(T0 + 9), vr(T0 + 5)))
        a("v_lshl_add_u32 %s, %s, 5, %s" % (vr(T0 + 9), vr(T0 + 9), vr(T0 + 6)))
        a("v_lshrrev_b32 %s, 2, %s" % (vr(T0 + 8), vr(T0 + 8)))
        a("v_lshl_add_u32 %s, %s, 12, %s" % (vr(VWB + 2 * j), vr(T0 + 8), vr(T0 + 9)))
        a("v_add_u32 %s, 0x10000, %s" % (vr(VWB + 2 * j + 1), vr(VWB + 2 * j)))

    if T != "GU":
        nb = (16 if T == "Q" else 8) * 800
        make_srd(a, 36, 8, 32 * 800)
        a("s_mul_i32 s48, s52, %d" % nb)
        a("v_lshlrev_b32 %s, 4, %s" % (vr(T0), vr(VTID)))
        a("v_add_u32 %s, s48, %s" % (vr(T0 + 1), vr(T0)))
        a("buffer_load_dwordx4 v[96:99], %s, s[36:39], 0 offen" % vr(T0 + 1))
        if nb > 8192:
            a("v_add_u32 %s, 8192, %s" % (vr(T0 + 2), vr(T0 + 1)))
            a("buffer_load_dwordx4 v[100:103], %s, s[36:39], 0 offen" % vr(T0 + 2))

    lab = [0]

    def loadW(slot):
        for i in range(3):
            if T == "Q" and i == 2:
                lab[0] += 1
                a("s_cmp_lt_u32 s47, 4")
                a("s_cbranch_scc0 %sskip%d" % (L, lab[0]))
            a("s_add_u32 m0, s46, 0x%x" % (slot * WSLOT + i * 8192))
            a("buffer_load_dwordx4 %s, s[%d:%d], s45 offen lds" % (vr(VOFFW + i), srdw[i], srdw[i] + 3))
            if T == "Q" and i == 2:
                a.label("%sskip%d" % (L, lab[0]))
        a("s_add_u32 s45, s45, %d" % (32 * rowb))

    def loadX(slot):
        for i in range(2):
            a("s_add_u32 m0, s46, 0x%x" % (LDS_X + slot * 16384 + i * 8192))
            a("buffer_load_dwordx4 %s, s[28:31], s44 offen lds" % vr(VOFFX + i))
        a("s_add_u32 s44, s44, 128")

    nW = 2 if T == "Q" else 3
    groups = []

    def need(names):
        if not any(n in names for (n, c) in groups):
            return 0
        last = max(i for i, (n, c) in enumerate(groups) if n in names)
        return sum(c for (n, c) in groups[last + 1:])

    loadX(0); groups.append(("x0", 2))
    loadW(0); groups.append(("w0", nW))
    loadX(1); groups.append(("x1", 2))
    loadW(1); groups.append(("w1", nW))
    loadW(2); groups.append(("w2", nW))
    if T != "GU":
        nb = (16 if T == "Q" else 8) * 800
        a("s_waitcnt vmcnt(%d)" % (4 + 3 * nW))
        a.vm = []
        a("v_lshlrev_b32 %s, 4, %s" % (vr(T0), vr(VTID)))
        a("v_add_u32 %s, %d, %s" % (vr(T0 + 1), LDS_WPHI, vr(T0)))
        a("v_mov_b32 %s, %d" % (vr(T0 + 3), LDS_DUMMY))
        if nb > 8192:
            a("ds_write_b128 %s, v[96:99]" % vr(T0 + 1))
            a("v_add_u32 %s, 8192, %s" % (vr(T0 + 2), vr(T0 + 1)))
            a("v_cmp_gt_u32 vcc, %d, %s" % (nb - 8192, vr(T0)))
            a("v_cndmask_b32 %s, %s, %s, vcc" % (vr(T0 + 2), vr(T0 + 3), vr(T0 + 2)))
            a("ds_write_b128 %s, v[100:103]" % vr(T0 + 2))
        else:
            a("v_cmp_gt_u32 vcc, %d, %s" % (nb, vr(T0)))
            a("v_cndmask_b32 %s, %s, %s, vcc" % (vr(T0 + 1), vr(T0 + 3), vr(T0 + 1)))
            a("ds_write_b128 %s, v[96:99]" % vr(T0 + 1))
        for r in range(4):
            a("v_mov_b32 %s, 0" % vr(104 + r))
        a("v_and_b32 %s, 3, %s" % (vr(T0), vr(VTID)))
        a("v_lshlrev_b32 %s, 4, %s" % (vr(T0), vr(T0)))
        a("v_add_u32 %s, %d, %s" % (vr(T0), LDS_ZERO, vr(T0)))
        a("ds_write_b128 %s, v[104:107]" % vr(T0))
        a("s_waitcnt lgkmcnt(0)")
    a.vm = []
    stamp(a, 1)
    prepass(a, L)
    stamp(a, 2)
    for r in range(nacc):
        a("v_mov_b32 %s, 0" % vr(ACC + r))

    CSR = MF

    def stats_loads():
        a("v_readfirstlane_b32 s48, %s" % vr(T0 + 1))
        a("s_cmp_ge_u32 s48, %d" % NPROD)
        a("s_cbranch_scc1 %swf_ok" % L)
        wait_flag(a, L + "wf", 60, 0, NPROD)
        make_srd(a, 56, 24, ST_BYTES, WS_ST)
        make_srd(a, 64, 24, CS_BYTES, WS_CS)
        a("v_and_b32 %s, 15, %s" % (vr(T0), vr(VL)))
        a("v_lshrrev_b32 %s, %d, %s" % (vr(T0 + 3), wmsh, vr(VW)))
        a("v_and_b32 %s, %d, %s" % (vr(T0 + 4), wnmask, vr(VW)))
        a("v_mul_u32_u24 %s, %d, %s" % (vr(T0 + 5), NI * 16, vr(T0 + 3)))
        a("v_add_u32 %s, %s, %s" % (vr(T0 + 5), vr(T0 + 5), vr(T0)))
        a("s_lshl_b32 s48, s51, 7")
        a("v_add_u32 %s, s48, %s" % (vr(T0 + 5), vr(T0 + 5)))
        a("v_lshlrev_b32 %s, 3, %s" % (vr(T0 + 5), vr(T0 + 5)))
        for i in range(NI):
            a("buffer_load_dwordx2 %s, %s, s[56:59], 0 offen offset:%d sc1" % (vr(RS + 2 * i, 2), vr(T0 + 5), 128 * i))
        if T == "GU":
            a("s_mul_i32 s48, s52, 192")
            a("s_add_u32 s48, s48, 1920")
            second = 1536
        elif T == "KV":
            a("s_mul_i32 s48, s52, 160")
            a("s_add_u32 s48, s48, 640")
            second = 640
        else:
            a("s_mul_i32 s48, s52, 320")
            second = 0
        a("v_mul_u32_u24 %s, %d, %s" % (vr(T0 + 6), 16 * HALF, vr(T0 + 4)))
        a("v_add3_u32 %s, %s, %s, s48" % (vr(T0 + 6), vr(T0 + 6), vr(T0)))
        a("v_lshlrev_b32 %s, 2, %s" % (vr(T0 + 6), vr(T0 + 6)))
        if second:
            a("v_add_u32 %s, %d, %s" % (vr(T0 + 7), second * 4, vr(T0 + 6)))
        for t in range(NT):
            j, up = t % HALF, t // HALF
            a("buffer_load_dword %s, %s, s[64:67], 0 offen offset:%d sc1" % (vr(CSR + t), vr(T0 + 7 if up else T0 + 6), 64 * j))

    FSZ = 48

    def rdfrags(s):
        fb = FB + (s & 1) * FSZ
        wb = (s & 3) * WSLOT
        xb = ((s >> 1) % 3) * 16384

        def rdx(i):
            a("ds_read_b128 %s, %s offset:%d" % (vr(fb + 4 * i, 4), vr(VXB + (s & 1)), xb + i * 2048))

        def rdw(t):
            j, up = t % HALF, t // HALF
            off = wb + (j >> 2) * 4096 + up * 12288
            for h in range(2):
                o = off + h * 512
                a("ds_read_b64_tr_b16 %s, %s offset:%d" % (vr(fb + 4 * NI + 4 * t + 2 * h, 2), vr(VWB + 2 * (j & 3) + (o >> 16)), o & 0xFFFF))
        rdx(0)
        rdw(0)
        for i in range(1, NI):
            rdx(i)
        for t in range(1, NT):
            rdw(t)

    def mfmas(s):
        fb = FB + (s & 1) * FSZ
        for t in range(NT):
            for i in range(NI):
                if T == "KV" and t >= 5:
                    mfma(a, acc(t, i), fb + 4 * i, fb + 4 * NI + 4 * t, acc(t, i))
                else:
                    mfma(a, acc(t, i), fb + 4 * NI + 4 * t, fb + 4 * i, acc(t, i))

    a("s_waitcnt vmcnt(%d)" % need(["x0", "w0"]))
    a("s_barrier")
    a.vm = []
    rdfrags(0)
    for s in range(20):
        if s < 19:
            a("s_waitcnt vmcnt(%d)" % need(["x%d" % ((s + 1) >> 1), "w%d" % (s + 1)]))
            if "nobar" not in FL or s == 2:
                a("s_barrier")
            if s == 2:
                signal(a, L + "sig", 60)
            if s % 2 == 0 and s // 2 + 2 <= 9 and "noload" not in FL:
                loadX((s // 2 + 2) % 3); groups.append(("x%d" % (s // 2 + 2), 2))
            if s + 3 <= 19 and "noload" not in FL:
                loadW((s + 3) & 3); groups.append(("w%d" % (s + 3), nW))
            if s == 10:
                a("v_mov_b32 %s, 0" % vr(T0))
                a("buffer_load_dword %s, %s, s[60:63], 0 offen sc1" % (vr(T0 + 1), vr(T0)))
                groups.append(("fl", 1))
            if s == 15:
                stats_loads()
                groups.append(("st", NI + NT))
            a.vm = []
            if "nords" not in FL or s < 1:
                rdfrags(s + 1)
        mfmas(s)
    if "noepi" in FL:
        a("s_endpgm")
        return

    stamp(a, 3)
    a("s_waitcnt vmcnt(0)")
    stamp(a, 4)
    WF = 96
    MFR = 136
    a("v_cmp_gt_u32 vcc, 16, %s" % vr(VL))
    for i in range(NI):
        a("v_lshrrev_b32 %s, 16, %s" % (vr(T0 + 2), vr(RS + 2 * i + 1)))
        a("v_xor_b32 %s, 0x8000, %s" % (vr(T0 + 2), vr(T0 + 2)))
        a("v_lshl_or_b32 %s, %s, 16, %s" % (vr(T0 + 3), vr(T0 + 2), vr(T0 + 2)))
        a("v_cndmask_b32 %s, 0, %s, vcc" % (vr(MFR + 4 * i), vr(T0 + 3)))
        a("v_cndmask_b32 %s, 0, %s, vcc" % (vr(MFR + 4 * i + 1), vr(T0 + 2)))
        a("v_mov_b32 %s, 0" % vr(MFR + 4 * i + 2))
        a("v_mov_b32 %s, 0" % vr(MFR + 4 * i + 3))
    for t in range(NT):
        split3(a, CSR + t, WF + 4 * t, T0 + 3 * (t % 3), T0 + 1 + 3 * (t % 3), T0 + 2 + 3 * (t % 3))
    for t in range(NT):
        for i in range(NI):
            if T == "KV" and t >= 5:
                mfma(a, acc(t, i), MFR + 4 * i, WF + 4 * t, acc(t, i))
            else:
                mfma(a, acc(t, i), WF + 4 * t, MFR + 4 * i, acc(t, i))
    stamp(a, 5)
    R = dict(NI=NI, NT=NT, acc=acc, L=L, wnmask=wnmask)
    {"GU": epi_gu, "Q": epi_q, "KV": epi_kv}[T](a, R)
    a("s_waitcnt vmcnt(0)")
    dump_stamps(a, 7, 0x1200000)
    a("s_endpgm")


def pk(op, d, x, y, z=None, bc=None):
    s = "v_pk_%s_f32 %s, %s, %s" % (op, vr(d, 2), x, y)
    if z is not None:
        s += ", " + z
    if bc:
        s += " op_sel_hi:[%s]" % ",".join(str(b) for b in bc)
    return s


def epi_gu(a, R):
    acc = R["acc"]
    make_srd(a, 40, 24, HF_BYTES, WS_HF)
    A0, A1 = 160, 161
    a("v_lshrrev_b32 %s, 2, %s" % (vr(T0), vr(VW)))
    a("v_mul_u32_u24 %s, 192, %s" % (vr(T0), vr(T0)))
    a("v_bfe_u32 %s, %s, 1, 1" % (vr(T0 + 1), vr(VW)))
    a("v_mul_u32_u24 %s, 3, %s" % (vr(T0 + 1), vr(T0 + 1)))
    a("s_mul_i32 s48, s51, 384")
    a("s_mul_i32 s49, s52, 6")
    a("s_add_u32 s48, s48, s49")
    a("v_add3_u32 %s, %s, %s, s48" % (vr(T0), vr(T0), vr(T0 + 1)))
    a("v_lshlrev_b32 %s, 10, %s" % (vr(T0), vr(T0)))
    a("v_lshl_add_u32 %s, %s, 4, %s" % (vr(T0), vr(VL), vr(T0)))
    a("v_and_b32 %s, 1, %s" % (vr(T0 + 1), vr(VW)))
    a("v_lshl_add_u32 %s, %s, 10, %s" % (vr(A0), vr(T0 + 1), vr(T0)))
    a("v_lshl_add_u32 %s, %s, 3, %s" % (vr(A1), vr(T0 + 1), vr(T0)))
    c0 = 2.0 * 0.7978845608028654 * LOG2E
    c1 = c0 * 0.044715
    a("v_mov_b32 v162, 0x%x" % f2u(-c1))
    a("v_mov_b32 v164, 0x%x" % f2u(-c0))
    a("s_mov_b32 s49, 0")
    for i in range(4):
        O = 168 + 8 * (i & 1)
        rs = vr(RS + 2 * i, 2)
        tt = [T0 + 4 * j for j in range(3)]
        for j in range(3):
            G, U = acc(j, i), acc(3 + j, i)
            for p in range(2):
                a(pk("mul", G + 2 * p, vr(G + 2 * p, 2), rs, bc=[1, 0]))
                a(pk("mul", U + 2 * p, vr(U + 2 * p, 2), rs, bc=[1, 0]))
        for j in range(3):
            G, t = acc(j, i), tt[j]
            for p in range(2):
                a(pk("mul", t + 2 * p, vr(G + 2 * p, 2), vr(G + 2 * p, 2)))
        for j in range(3):
            t = tt[j]
            for p in range(2):
                a(pk("fma", t + 2 * p, vr(t + 2 * p, 2), "v[162:163]", "v[164:165]", bc=[1, 0, 0]))
        for j in range(3):
            G, t = acc(j, i), tt[j]
            for p in range(2):
                a(pk("mul", t + 2 * p, vr(t + 2 * p, 2), vr(G + 2 * p, 2)))
        for j in range(3):
            for r in range(4):
                a("v_exp_f32 %s, %s" % (vr(tt[j] + r), vr(tt[j] + r)))
        for j in range(3):
            G, U = acc(j, i), acc(3 + j, i)
            for p in range(2):
                a(pk("mul", G + 2 * p, vr(G + 2 * p, 2), vr(U + 2 * p, 2)))
        for j in range(3):
            t = tt[j]
            for p in range(2):
                a(pk("add", t + 2 * p, vr(t + 2 * p, 2), "1.0", bc=[1, 0]))
        for j in range(3):
            for r in range(4):
                a("v_rcp_f32 %s, %s" % (vr(tt[j] + r), vr(tt[j] + r)))
        for j in range(3):
            G, t = acc(j, i), tt[j]
            for p in range(2):
                a(pk("mul", G + 2 * p, vr(G + 2 * p, 2), vr(t + 2 * p, 2)))
        for j in range(3):
            G = acc(j, i)
            a("v_cvt_pk_bf16_f32 %s, %s, %s" % (vr(O + 2 * j), vr(G), vr(G + 1)))
            a("v_cvt_pk_bf16_f32 %s, %s, %s" % (vr(O + 2 * j + 1), vr(G + 2), vr(G + 3)))
        a("buffer_store_dwordx4 %s, %s, s[40:43], s49 offen" % (vr(O, 4), vr(A0)))
        a("buffer_store_dwordx2 %s, %s, s[40:43], s49 offen offset:2048" % (vr(O + 4, 2), vr(A1)))
        if i < 3:
            a("s_add_u32 s49, s49, %d" % (48 * 1024))


def wphi_frags(a, R, AF, AD):
    wnmask = R["wnmask"]
    a("v_and_b32 %s, 3, %s" % (vr(T0), vr(VL)))
    a("v_bfe_u32 %s, %s, 2, 2" % (vr(T0 + 1), vr(VL)))
    a("v_lshrrev_b32 %s, 4, %s" % (vr(T0 + 2), vr(VL)))
    a("v_and_b32 %s, %d, %s" % (vr(T0 + 3), wnmask, vr(VW)))
    a("v_lshl_add_u32 %s, %s, 2, %s" % (vr(T0 + 3), vr(T0 + 3), vr(T0)))
    a("v_mul_u32_u24 %s, 800, %s" % (vr(T0 + 3), vr(T0 + 3)))
    a("v_add_u32 %s, %d, %s" % (vr(T0 + 3), LDS_WPHI, vr(T0 + 3)))
    a("v_mul_u32_u24 %s, 20, %s" % (vr(T0 + 4), vr(T0)))
    a("v_lshlrev_b32 %s, 2, %s" % (vr(T0 + 5), vr(T0 + 2)))
    a("v_sub_u32 %s, %s, %s" % (vr(T0 + 5), vr(T0 + 5), vr(T0 + 4)))
    a("v_mov_b32 %s, %d" % (vr(T0 + 8), LDS_ZERO))
    combos = [(0, 0), (0, 1), (1, 0), (1, 1), (2, 0)]
    for n, (c, hh) in enumerate(combos):
        a("v_add_u32 %s, %d, %s" % (vr(T0 + 6), 32 * c + 16 * hh, vr(T0 + 5)))
        a("v_cmp_gt_u32 vcc, 20, %s" % vr(T0 + 6))
        a("v_add_u32 %s, %s, %s" % (vr(T0 + 6), vr(T0 + 6), vr(T0 + 1)))
        a("v_mul_u32_u24 %s, 40, %s" % (vr(T0 + 6), vr(T0 + 6)))
        a("v_add_u32 %s, %s, %s" % (vr(T0 + 6), vr(T0 + 6), vr(T0 + 3)))
        a("v_cndmask_b32 %s, %s, %s, vcc" % (vr(AD + n), vr(T0 + 8), vr(T0 + 6)))
    for tp in range(5):
        for n, (c, hh) in enumerate(combos):
            a("ds_read_b64_tr_b16 %s, %s offset:%d" % (vr(AF + (tp * 3 + c) * 4 + 2 * hh, 2), vr(AD + n), tp * 8))
        a("v_mov_b32 %s, 0" % vr(AF + (tp * 3 + 2) * 4 + 2))
        a("v_mov_b32 %s, 0" % vr(AF + (tp * 3 + 2) * 4 + 3))


def phi_tile(a, R, i, AF, BQ, P, E, TT):
    acc = R["acc"]
    rs = vr(RS + 2 * i, 2)
    p = lambda r: P[r >> 2] + (r & 3)
    e = lambda r: E[r >> 2] + (r & 3)
    for t in range(5):
        A = acc(t, i)
        for q in range(2):
            a(pk("mul", A + 2 * q, vr(A + 2 * q, 2), rs, bc=[1, 0]))
        bq = BQ[t >> 1] + 2 * (t & 1)
        a("v_cvt_pk_bf16_f32 %s, %s, %s" % (vr(bq), vr(A), vr(A + 1)))
        a("v_cvt_pk_bf16_f32 %s, %s, %s" % (vr(bq + 1), vr(A + 2), vr(A + 3)))
    a("v_mov_b32 %s, 0" % vr(BQ[2] + 2))
    a("v_mov_b32 %s, 0" % vr(BQ[2] + 3))
    for c in range(3):
        for tp in range(5):
            mfma(a, P[tp], AF + (tp * 3 + c) * 4, BQ[c], None if c == 0 else P[tp])
    mx, mn = TT, TT + 2
    a("v_max3_f32 %s, %s, %s, %s" % (vr(mx), vr(p(0)), vr(p(1)), vr(p(2))))
    a("v_min3_f32 %s, %s, %s, %s" % (vr(mn), vr(p(0)), vr(p(1)), vr(p(2))))
    for r in range(3, 19, 2):
        a("v_max3_f32 %s, %s, %s, %s" % (vr(mx), vr(mx), vr(p(r)), vr(p(r + 1))))
        a("v_min3_f32 %s, %s, %s, %s" % (vr(mn), vr(mn), vr(p(r)), vr(p(r + 1))))
    a("v_max_f32 %s, %s, %s" % (vr(mx), vr(mx), vr(p(19))))
    a("v_min_f32 %s, %s, %s" % (vr(mn), vr(mn), vr(p(19))))
    a("v_mov_b32 %s, 0x%x" % (vr(TT + 4), f2u(LOG2E)))
    a("v_mul_f32 %s, %s, %s" % (vr(mx), vr(mx), vr(TT + 4)))
    a("v_mul_f32 %s, %s, %s" % (vr(mn), vr(mn), vr(TT + 4)))
    for r in range(0, 20, 2):
        a(pk("fma", e(r), vr(p(r), 2), vr(TT + 4, 2), vr(mx, 2), bc=[1, 0, 0]) + " neg_lo:[0,0,1] neg_hi:[0,0,1]")
        a(pk("fma", p(r), vr(p(r), 2), vr(TT + 4, 2), vr(mn, 2), bc=[1, 0, 0]) + " neg_lo:[1,0,0] neg_hi:[1,0,0]")
    for r in range(20):
        a("v_exp_f32 %s, %s" % (vr(e(r)), vr(e(r))))
        a("v_exp_f32 %s, %s" % (vr(p(r)), vr(p(r))))
    s1, s2 = TT + 6, TT + 8
    a(pk("add", s1, vr(e(0), 2), vr(e(2), 2)))
    a(pk("add", s2, vr(p(0), 2), vr(p(2), 2)))
    for r in range(4, 20, 2):
        a(pk("add", s1, vr(s1, 2), vr(e(r), 2)))
        a(pk("add", s2, vr(s2, 2), vr(p(r), 2)))
    a("v_add_f32 %s, %s, %s" % (vr(s1), vr(s1), vr(s1 + 1)))
    a("v_add_f32 %s, %s, %s" % (vr(s2), vr(s2), vr(s2 + 1)))
    a("v_rcp_f32 %s, %s" % (vr(s1), vr(s1)))
    a("v_rcp_f32 %s, %s" % (vr(s2), vr(s2)))
    for r in range(0, 20, 2):
        a(pk("mul", e(r), vr(e(r), 2), vr(s1, 2), bc=[1, 0]))
        a(pk("mul", p(r), vr(p(r), 2), vr(s2, 2), bc=[1, 0]))
    for r in range(10):
        a("v_cvt_pk_bf16_f32 %s, %s, %s" % (vr(e(r)), vr(e(2 * r)), vr(e(2 * r + 1))))
    for r in range(10):
        a("v_cvt_pk_bf16_f32 %s, %s, %s" % (vr(e(10 + r)), vr(p(2 * r)), vr(p(2 * r + 1))))


def phi_pair(a, R, i0, AF):
    acc = R["acc"]
    PA = [164 + 4 * k for k in range(5)]
    EA = [184 + 4 * k for k in range(5)]
    PB = [acc(t, i0) for t in range(5)]
    EB = [acc(t, i0 + 1) for t in range(5)]
    ra, rb = Rec(), Rec()
    phi_tile(ra, R, i0, AF, [80, 84, 88], PA, EA, T0)
    phi_tile(rb, R, i0 + 1, AF, [92, 156, 238], PB, EB, T0 + 10)
    head = 22
    for x, y in zip(ra.l[:head], rb.l[:head]):
        a(x)
        a(y)
    ra.l, rb.l = ra.l[head:], rb.l[head:]
    merge(a, ra, rb)
    return EA, EB


def epi_q(a, R):
    a.comment("Q epilogue")
    AF = 96
    AD = 156
    BQ = 164
    BQ = 80
    P, E = 164, 184
    make_srd(a, 40, 24, PQF_BYTES, WS_PQF)
    wphi_frags(a, R, AF, AD)
    A0 = 161
    a("v_lshrrev_b32 %s, 2, %s" % (vr(T0), vr(VW)))
    a("v_lshlrev_b32 %s, 5, %s" % (vr(T0), vr(T0)))
    a("v_and_b32 %s, 3, %s" % (vr(T0 + 1), vr(VW)))
    a("s_lshl_b32 s48, s51, 6")
    a("s_lshl_b32 s49, s52, 2")
    a("s_add_u32 s48, s48, s49")
    a("v_add3_u32 %s, %s, %s, s48" % (vr(T0), vr(T0), vr(T0 + 1)))
    a("v_mul_u32_u24 %s, 5120, %s" % (vr(T0), vr(T0)))
    a("v_lshl_add_u32 %s, %s, 4, %s" % (vr(A0), vr(VL), vr(T0)))
    a("s_mov_b32 s49, %d" % (8 * 5120))
    a("s_movk_i32 s50, 4096")
    for i0 in (0, 2):
        for qq in phi_pair(a, R, i0, AF):
            for c in range(5):
                if c < 4:
                    a("buffer_store_dwordx4 %s, %s, s[40:43], 0 offen offset:%d" % (vr(qq[c], 4), vr(A0), 1024 * c))
                else:
                    a("buffer_store_dwordx4 %s, %s, s[40:43], s50 offen" % (vr(qq[c], 4), vr(A0)))
            a("v_add_u32 %s, s49, %s" % (vr(A0), vr(A0)))


def epi_kv(a, R):
    acc = R["acc"]
    L = R["L"]
    AF = 96
    AD = 156
    ONE, RSF, RR = 164, 168, 176
    r1 = Rec()
    t1 = T0 + 10
    r1("v_cmp_gt_u32 vcc, 16, %s" % vr(VL))
    r1("v_mov_b32 %s, 0x3f803f80" % vr(t1))
    r1("v_mov_b32 %s, 0x3f80" % vr(t1 + 1))
    r1("v_cndmask_b32 %s, 0, %s, vcc" % (vr(ONE), vr(t1)))
    r1("v_cndmask_b32 %s, 0, %s, vcc" % (vr(ONE + 1), vr(t1 + 1)))
    r1("v_mov_b32 %s, 0" % vr(ONE + 2))
    r1("v_mov_b32 %s, 0" % vr(ONE + 3))
    for i in range(2):
        r1("v_mov_b32 %s, %s" % (vr(t1 + 4), vr(RS + 2 * i)))
        split3(r1, t1 + 4, RSF + 4 * i, t1, t1 + 1, t1 + 2)
    for x in r1.l:
        a(x)
    for i in range(2):
        mfma(a, RR + 4 * i, RSF + 4 * i, ONE, None)
    wphi_frags(a, R, AF, AD)
    for i in range(2):
        for j in range(5):
            A = acc(5 + j, i)
            for p in range(2):
                a(pk("mul", A + 2 * p, vr(A + 2 * p, 2), vr(RR + 4 * i + 2 * p, 2)))
    for j in range(5):
        A0_, A1_ = acc(5 + j, 0), acc(5 + j, 1)
        a("v_cvt_pk_bf16_f32 %s, %s, %s" % (vr(A0_), vr(A0_), vr(A0_ + 1)))
        a("v_cvt_pk_bf16_f32 %s, %s, %s" % (vr(A0_ + 1), vr(A0_ + 2), vr(A0_ + 3)))
        a("v_cvt_pk_bf16_f32 %s, %s, %s" % (vr(A0_ + 2), vr(A1_), vr(A1_ + 1)))
        a("v_cvt_pk_bf16_f32 %s, %s, %s" % (vr(A0_ + 3), vr(A1_ + 2), vr(A1_ + 3)))
    q0, q1 = phi_pair(a, R, 0, AF)
    SEL = 144
    ONES = 152
    a("v_and_b32 %s, 15, %s" % (vr(T0), vr(VL)))
    a("v_lshrrev_b32 %s, 4, %s" % (vr(T0 + 1), vr(VL)))
    a("v_lshrrev_b32 %s, 3, %s" % (vr(T0 + 2), vr(T0)))
    a("v_and_b32 %s, 7, %s" % (vr(T0 + 3), vr(T0)))
    a("v_and_b32 %s, 1, %s" % (vr(T0 + 4), vr(T0 + 3)))
    a("v_lshlrev_b32 %s, 4, %s" % (vr(T0 + 4), vr(T0 + 4)))
    a("v_mov_b32 %s, 0x3f80" % vr(T0 + 5))
    a("v_lshlrev_b32 %s, %s, %s" % (vr(T0 + 5), vr(T0 + 4), vr(T0 + 5)))
    a("v_lshrrev_b32 %s, 1, %s" % (vr(T0 + 3), vr(T0 + 3)))
    for aa in range(2):
        a("v_add_u32 %s, %d, %s" % (vr(T0 + 6), 2 * aa, vr(T0 + 2)))
        a("v_cmp_eq_u32 s[54:55], %s, %s" % (vr(T0 + 6), vr(T0 + 1)))
        a("v_cndmask_b32 %s, 0, %s, s[54:55]" % (vr(T0 + 7), vr(T0 + 5)))
        for r in range(4):
            a("v_cmp_eq_u32 vcc, %d, %s" % (r, vr(T0 + 3)))
            a("v_cndmask_b32 %s, 0, %s, vcc" % (vr(SEL + 4 * aa + r), vr(T0 + 7)))
    for r in range(4):
        a("v_mov_b32 %s, 0x3f803f80" % vr(ONES + r))
    A2 = 104
    D = 156
    combos = [(c, aa) for c in range(5) for aa in range(2)]
    WA = AF
    r2 = Rec()
    r2("v_mul_u32_u24 %s, 13440, %s" % (vr(T0 + 8), vr(VW)))
    r2("v_and_b32 %s, 1, %s" % (vr(T0 + 9), vr(T0 + 1)))
    r2("v_lshl_add_u32 %s, %s, 4, %s" % (vr(T0 + 8), vr(T0 + 9), vr(T0 + 8)))
    r2("v_lshrrev_b32 %s, 1, %s" % (vr(T0 + 9), vr(T0 + 1)))
    r2("v_mov_b32 %s, %d" % (vr(T0 + 10), LDS_DUMMY))
    pairs = []
    n = 0
    for aa in range(2):
        r2("v_add_u32 %s, %d, %s" % (vr(T0 + 11), 2 * aa, vr(T0 + 9)))
        r2("v_mul_u32_u24 %s, 3360, %s" % (vr(T0 + 12), vr(T0 + 11)))
        r2("v_add_u32 %s, %s, %s" % (vr(T0 + 12), vr(T0 + 12), vr(T0 + 8)))
        r2("v_mul_u32_u24 %s, 20, %s" % (vr(T0 + 13), vr(T0 + 11)))
        for Tt in ((0, 1, 2) if aa == 0 else (2, 3, 4)):
            r2("v_add_u32 %s, %d, %s" % (vr(T0 + 14), 16 * Tt, vr(T0)))
            r2("v_sub_u32 %s, %s, %s" % (vr(T0 + 14), vr(T0 + 14), vr(T0 + 13)))
            r2("v_cmp_gt_u32 vcc, 20, %s" % vr(T0 + 14))
            r2("v_mul_u32_u24 %s, 160, %s" % (vr(T0 + 14), vr(T0 + 14)))
            r2("v_add_u32 %s, %s, %s" % (vr(T0 + 14), vr(T0 + 14), vr(T0 + 12)))
            r2("v_cndmask_b32 %s, %s, %s, vcc" % (vr(WA + n), vr(T0 + 10), vr(T0 + 14)))
            pairs.append((aa, Tt, WA + n))
            n += 1
        r2("v_cmp_eq_u32 vcc, 0, %s" % vr(T0))
        r2("v_add_u32 %s, 3200, %s" % (vr(T0 + 14), vr(T0 + 12)))
        r2("v_cndmask_b32 %s, %s, %s, vcc" % (vr(WA + 6 + aa), vr(T0 + 10), vr(T0 + 14)))
    r3 = Rec()
    for n_ in range(12):
        if n_ < 10:
            c, aa = combos[n_]
            d = D + 8 * (n_ % 3)
            mfma(r3, d, q0[c], SEL + 4 * aa, None)
            mfma(r3, d + 4, q1[c], SEL + 4 * aa, None)
        if n_ >= 2:
            m_ = n_ - 2
            d = D + 8 * (m_ % 3)
            x = A2 + 4 * m_
            for r in range(4):
                r3("v_cvt_pk_bf16_f32 %s, %s, %s" % (vr(x + r), vr(d + 2 * r), vr(d + 2 * r + 1)))
    merge(a, r3, r2)
    a("s_waitcnt lgkmcnt(0)")
    a("s_barrier")
    stamp(a, 3)
    OUTS = [156, 230]
    for n_ in range(11):
        if n_ < 10:
            c, aa = combos[n_]
            o = OUTS[n_ & 1]
            x = A2 + 4 * n_
            ps = [p for p in pairs if p[0] == aa]
            for q, (_, Tt, ad) in enumerate(ps):
                mfma(a, o + 4 * q, x, acc(5 + Tt, 0), None)
            mfma(a, o + 12, x, ONES, None)
        if n_ >= 1:
            (c1, a1) = combos[n_ - 1]
            o1 = OUTS[(n_ - 1) & 1]
            ps1 = [p for p in pairs if p[0] == a1]
            for q, (_, Tt, ad) in enumerate(ps1):
                a("ds_write_b128 %s, %s offset:%d" % (vr(ad), vr(o1 + 4 * q, 4), 32 * c1))
            a("ds_write_b128 %s, %s offset:%d" % (vr(WA + 6 + a1), vr(o1 + 12, 4), 32 * c1))
    a("s_waitcnt lgkmcnt(0)")
    a("s_barrier")
    stamp(a, 4)
    make_srd(a, 40, 24, KVA_BYTES, WS_KVA)
    a("s_mul_i32 s48, s52, %d" % (8 * 3360))
    a("v_lshlrev_b32 %s, 2, %s" % (vr(T0), vr(VTID)))
    a("v_add_u32 %s, %d, %s" % (vr(T0 + 1), 2 * 26880, vr(T0)))
    for q in range(14):
        b = 32 + 4 * q
        for wm in range(4):
            a("ds_read_b32 %s, %s offset:%d" % (vr(b + wm), vr(T0 if wm < 2 else T0 + 1), (wm & 1) * 26880 + q * 2048))
    a("v_mov_b32 %s, 0x7fffff00" % vr(T0 + 3))
    a("v_cmp_gt_u32 vcc, %d, %s" % (6720 - 13 * 512, vr(VTID)))
    a("v_cndmask_b32 %s, %s, %s, vcc" % (vr(T0 + 2), vr(T0 + 3), vr(T0)))
    for q in range(14):
        b = 32 + 4 * q
        a("v_add_f32 %s, %s, %s" % (vr(b), vr(b), vr(b + 1)))
        a("v_add_f32 %s, %s, %s" % (vr(b + 2), vr(b + 2), vr(b + 3)))
        a("v_add_f32 %s, %s, %s" % (vr(b), vr(b), vr(b + 2)))
        a("buffer_atomic_add_f32 %s, %s, s[40:43], s48 offen offset:%d sc1" % (vr(b), vr(T0 + 2 if q == 13 else T0), (q * 2048) & 4095)
          if (q & 1) == 0 else
          "buffer_atomic_add_f32 %s, %s, s[40:43], s48 offen offset:%d sc1" % (vr(b), vr(T0 + 2 if q == 13 else T0), 2048))
        if q & 1:
            a("s_add_u32 s48, s48, 4096")


def repack(a):
    a.comment("==== repack")
    a("v_and_b32 v1, 63, v0")
    a("v_lshrrev_b32 v2, 6, v0")
    a("v_readfirstlane_b32 s47, v2")
    a("s_sub_u32 s51, s2, 224")
    make_srd(a, 32, 24, W2F_BYTES, WS_W2F)
    a("v_and_b32 v3, 15, v1")
    a("v_lshrrev_b32 v4, 4, v1")
    a("v_lshlrev_b32 v5, 4, v0")
    a("s_lshl_b32 s46, s47, 10")
    a("v_mul_u32_u24 v6, 160, v2")
    a("v_and_b32 v7, 3, v3")
    a("v_lshl_add_u32 v6, v7, 3, v6")
    a("v_lshrrev_b32 v7, 2, v3")
    a("v_mul_u32_u24 v8, %d, v2" % (72 * 5120))
    a("v_lshl_add_u32 v8, v1, 4, v8")
    a("s_cmp_ge_u32 s51, 24")
    a("s_cbranch_scc1 Lrp_o")
    a("s_cmp_ge_u32 s51, 16")
    a("s_cbranch_scc1 Lk1_exit")
    make_srd(a, 28, 18, 1536 * 1280)
    a("s_mul_i32 s48, s51, %d" % (96 * 1280))
    for q in range(15):
        a("s_add_u32 m0, s46, %d" % (q * 8192))
        a("buffer_load_dwordx4 v5, s[28:31], s48 offen lds")
        a("s_add_u32 s48, s48, 8192")
    a("v_lshl_add_u32 v9, v4, 2, v7")
    a("v_mul_u32_u24 v9, 1280, v9")
    a("v_add_u32 v9, v9, v6")
    a("v_add_u32 v10, %d, v9" % (48 * 1280))
    a("s_waitcnt vmcnt(0)")
    a("s_barrier")
    a("s_mul_i32 s48, s51, %d" % (3 * 5120))
    tiles = [(0, 16), (48, 64), (32, 80)]
    for cc in range(3):
        for t in range(5):
            d = 16 + 4 * (cc * 5 + t)
            for hh in range(2):
                row = tiles[cc][hh]
                a("ds_read_b64_tr_b16 %s, %s offset:%d" % (vr(d + 2 * hh, 2), "v10" if row >= 48 else "v9", t * 32 + (row % 48) * 1280))
    for n in range(15):
        d = 16 + 4 * n
        a("buffer_store_dwordx4 %s, v8, s[32:35], s48 offen offset:%d" % (vr(d, 4), (n & 3) * 1024))
        if (n & 3) == 3:
            a("s_add_u32 s48, s48, 4096")
    a("s_endpgm")
    a.label("Lrp_o")
    a.hist = []
    make_srd(a, 28, 10, 640 * 1280)
    a("s_sub_u32 s51, s51, 24")
    a("s_mul_i32 s48, s51, %d" % (80 * 1280))
    for q in range(13):
        a("s_add_u32 m0, s46, %d" % (q * 8192))
        a("buffer_load_dwordx4 v5, s[28:31], s48 offen lds")
        a("s_add_u32 s48, s48, 8192")
    a("v_mul_u32_u24 v9, 20, v4")
    a("v_add_u32 v9, v9, v7")
    a("v_mul_u32_u24 v9, 1280, v9")
    a("v_add_u32 v9, v9, v6")
    a("s_waitcnt vmcnt(0)")
    a("s_barrier")
    for c in range(3):
        for t in range(5):
            d = 16 + 4 * (c * 5 + t)
            a("ds_read_b64_tr_b16 %s, v9 offset:%d" % (vr(d, 2), t * 32 + 8 * c * 1280))
            if c < 2:
                a("ds_read_b64_tr_b16 %s, v9 offset:%d" % (vr(d + 2, 2), t * 32 + (8 * c + 4) * 1280))
            else:
                a("v_mov_b32 %s, 0" % vr(d + 2))
                a("v_mov_b32 %s, 0" % vr(d + 3))
    a("s_mul_i32 s48, s51, %d" % (3 * 5120))
    a("s_add_u32 s48, s48, %d" % (48 * 5120))
    for n in range(15):
        d = 16 + 4 * n
        a("buffer_store_dwordx4 %s, v8, s[32:35], s48 offen offset:%d" % (vr(d, 4), (n & 3) * 1024))
        if (n & 3) == 3:
            a("s_add_u32 s48, s48, 4096")
    a("s_endpgm")


def gen_k1(a):
    a.label("k1_kernel")
    load_kernargs(a)
    a("s_cmp_ge_u32 s2, 256")
    a("s_cbranch_scc1 Lk1_exit")
    a("s_waitcnt lgkmcnt(0)")
    a("s_cmp_ge_u32 s2, 224")
    a("s_cbranch_scc1 Lk1_rp")
    a("s_cmp_ge_u32 s2, 192")
    a("s_cbranch_scc1 Lk1_q")
    a("s_cmp_ge_u32 s2, 128")
    a("s_cbranch_scc1 Lk1_kv")
    a("s_lshr_b32 s51, s2, 3")
    a("s_and_b32 s52, s2, 7")
    k1_path(a, "GU")
    a.label("Lk1_kv")
    a.hist = []
    a("s_sub_u32 s48, s2, 128")
    a("s_lshr_b32 s51, s48, 2")
    a("s_and_b32 s52, s48, 3")
    k1_path(a, "KV")
    a.label("Lk1_q")
    a.hist = []
    a("s_sub_u32 s48, s2, 192")
    a("s_lshr_b32 s51, s48, 1")
    a("s_and_b32 s52, s48, 1")
    k1_path(a, "Q")
    a.label("Lk1_rp")
    a.hist = []
    repack(a)
    a.label("Lk1_exit")
    a("s_endpgm")


K2_LDS = 81920
ND = 4


def gen_k2(a):
    a.label("k2_kernel")
    load_kernargs(a)
    a("s_cmp_ge_u32 s2, 256")
    a("s_cbranch_scc1 Lk2_exit")
    a("s_waitcnt lgkmcnt(0)")
    a("s_and_b32 s51, s2, 31")
    a("s_lshr_b32 s52, s2, 5")
    make_srd(a, 28, 24, HF_BYTES, WS_HF)
    make_srd(a, 32, 24, OF_BYTES, WS_OF)
    make_srd(a, 36, 24, W2F_BYTES, WS_W2F)
    make_srd(a, 40, 24, PQF_BYTES, WS_PQF)
    make_srd(a, 56, 24, KVA_BYTES, WS_KVA)
    make_srd(a, 60, 24, 4096, WS_FLG)
    ACC2 = 0
    FR = 80
    VA, VO, VWt = 224, 225, 226
    L2, W2, TID = 227, 228, 229
    T = 230
    a("v_mov_b32 %s, v0" % vr(TID))
    a("v_and_b32 %s, 63, v0" % vr(L2))
    a("v_lshrrev_b32 %s, 6, v0" % vr(W2))
    a("v_readfirstlane_b32 s47, %s" % vr(W2))
    stamp(a, 0)
    a("s_mul_i32 s48, s51, %d" % (4 * 48 * 1024))
    if "sameA" in FL:
        a("s_mov_b32 s48, 0")
    a("v_lshlrev_b32 %s, 4, %s" % (vr(T), vr(L2)))
    a("v_lshl_add_u32 %s, %s, 10, %s" % (vr(T + 1), vr(W2), vr(T)))
    a("v_add_u32 %s, s48, %s" % (vr(VA), vr(T + 1)))
    a("s_mul_i32 s48, s51, %d" % (4 * 24 * 1024))
    a("v_add_u32 %s, s48, %s" % (vr(VO), vr(T + 1)))
    a("s_mul_i32 s48, s52, %d" % (72 * 5120))
    if "sameW" in FL:
        a("s_mov_b32 s48, 0")
    a("v_mul_u32_u24 %s, 5120, %s" % (vr(T + 2), vr(W2)))
    a("v_add3_u32 %s, %s, %s, s48" % (vr(VWt), vr(T + 2), vr(T)))

    NSTEP = 18

    a("s_mul_i32 s53, s51, 0x5556")
    a("s_lshr_b32 s53, s53, 18")
    a("s_mul_i32 s53, s53, 12")
    a("s_sub_u32 s53, s51, s53")
    if "norot" in FL:
        a("s_mov_b32 s53, 0")

    def loads(s):
        b = FR + (s % ND) * 36
        if s == 12:
            a("s_lshr_b32 s53, s53, 1")
        a("s_mul_i32 s48, s53, 20480")
        if s >= 12:
            a("s_add_u32 s48, s48, %d" % (12 * 20480))
        a("s_add_u32 s49, s48, 4096")
        for t in range(5):
            a("buffer_load_dwordx4 %s, %s, s[36:39], s48 offen offset:%d" % (vr(b + 4 * t, 4), vr(VWt), t * 1024) if t < 4 else
              "buffer_load_dwordx4 %s, %s, s[36:39], s49 offen" % (vr(b + 4 * t, 4), vr(VWt)))
        a("s_lshl_b32 s48, s53, 12")
        for i in range(4):
            if s < 12:
                a("buffer_load_dwordx4 %s, %s, s[28:31], s48 offen" % (vr(b + 20 + 4 * i, 4), vr(VA)))
                a("s_add_u32 s48, s48, %d" % (48 * 1024))
            else:
                a("buffer_load_dwordx4 %s, %s, s[32:35], s48 offen sc1" % (vr(b + 20 + 4 * i, 4), vr(VO)))
                a("s_add_u32 s48, s48, %d" % (24 * 1024))
        a("s_add_u32 s53, s53, 1")
        a("s_cmp_ge_u32 s53, %d" % (12 if s < 12 else 6))
        a("s_cselect_b32 s53, 0, s53")

    a.auto = True
    a("s_mul_i32 s48, s52, %d" % (4 * 3360))
    a("v_lshlrev_b32 %s, 4, %s" % (vr(T + 3), vr(TID)))
    a("v_add_u32 %s, s48, %s" % (vr(T + 4), vr(T + 3)))
    a("v_mov_b32 %s, 0x7fffff00" % vr(T + 5))
    a("v_cmp_gt_u32 vcc, %d, %s" % (840 - 768, vr(TID)))
    a("v_cndmask_b32 %s, %s, %s, vcc" % (vr(T + 5), vr(T + 5), vr(T + 4)))
    for q in range(3):
        a("buffer_load_dwordx4 %s, %s, s[56:59], 0 offen offset:%d" % (vr(4 * q, 4), vr(T + 4), 0) if q == 0 else
          "buffer_load_dwordx4 %s, %s, s[56:59], s49 offen" % (vr(4 * q, 4), vr(T + 4)))
        a("s_mov_b32 s49, %d" % (4096 * (q + 1)))
    a("buffer_load_dwordx4 v[12:15], %s, s[56:59], s49 offen" % vr(T + 5))
    a("s_lshl_b32 s48, s51, 5")
    a("s_add_u32 s48, s48, s52")
    a("s_mul_i32 s48, s48, 5120")
    a("v_mul_u32_u24 %s, %d, %s" % (vr(T + 6), 8 * 5120, vr(W2)))
    a("v_add3_u32 %s, %s, %s, s48" % (vr(T + 6), vr(T + 6), vr(T)))
    a("s_mov_b32 s49, 4096")
    for c in range(5):
        if c < 4:
            a("buffer_load_dwordx4 %s, %s, s[40:43], 0 offen offset:%d" % (vr(16 + 4 * c, 4), vr(T + 6), c * 1024))
        else:
            a("buffer_load_dwordx4 %s, %s, s[40:43], s49 offen" % (vr(16 + 4 * c, 4), vr(T + 6)))
    n_before = len(a.vm)
    for s in range(ND):
        loads(s)
    a("v_lshlrev_b32 %s, 3, %s" % (vr(T + 3), vr(TID)))
    for q in range(4):
        a("v_cvt_pk_bf16_f32 %s, %s, %s" % (vr(4 * q), vr(4 * q), vr(4 * q + 1)))
        a("v_cvt_pk_bf16_f32 %s, %s, %s" % (vr(4 * q + 1), vr(4 * q + 2), vr(4 * q + 3)))
        a("ds_write_b64 %s, %s offset:%d" % (vr(T + 3), vr(4 * q, 2), q * 2048))
    a("s_waitcnt lgkmcnt(0)")
    a("s_barrier")
    stamp(a, 1)
    a("v_bfe_u32 %s, %s, 2, 2" % (vr(T + 3), vr(L2)))
    a("v_and_b32 %s, 3, %s" % (vr(T + 4), vr(L2)))
    a("v_lshrrev_b32 %s, 4, %s" % (vr(T + 5), vr(L2)))
    a("v_mul_u32_u24 %s, 1680, %s" % (vr(T + 7), vr(T + 3)))
    a("v_mul_u32_u24 %s, 80, %s" % (vr(T + 4), vr(T + 4)))
    a("v_add_u32 %s, %s, %s" % (vr(T + 4), vr(T + 4), vr(T + 7)))
    a("v_add_u32 %s, 1600, %s" % (vr(T + 7), vr(T + 7)))
    a("v_cmp_eq_u32 vcc, %s, %s" % (vr(T + 3), vr(T + 5)))
    a("v_mov_b32 %s, 6720" % vr(T + 8))
    a("v_cndmask_b32 %s, %s, %s, vcc" % (vr(T + 7), vr(T + 8), vr(T + 7)))
    for tp in range(5):
        a("v_add_u32 %s, %d, %s" % (vr(T + 9), 320 * tp, vr(T + 4)))
        a("v_cndmask_b32 %s, %s, %s, vcc" % (vr(T + 10 + tp), vr(T + 8), vr(T + 9)))
    NUM = 36
    DEN = 56
    AFr = 60
    for tp in range(6):
        ad = T + 10 + tp if tp < 5 else T + 7
        dst = NUM + 4 * tp if tp < 5 else DEN
        for c in range(5):
            a("ds_read_b128 %s, %s offset:%d" % (vr(AFr + 4 * c, 4), vr(ad), c * 16))
        for c in range(5):
            mfma(a, dst, AFr + 4 * c, 16 + 4 * c, None if c == 0 else dst)
    a("v_cvt_pk_bf16_f32 %s, %s, %s" % (vr(T + 3), vr(DEN), vr(DEN)))
    a("v_lshlrev_b32 %s, 16, %s" % (vr(T + 3), vr(T + 3)))
    a("v_add_f32 %s, 0x%x, %s" % (vr(T + 3), f2u(1e-6), vr(T + 3)))
    a("v_cvt_pk_bf16_f32 %s, %s, %s" % (vr(T + 3), vr(T + 3), vr(T + 3)))
    a("v_lshlrev_b32 %s, 16, %s" % (vr(T + 3), vr(T + 3)))
    a("v_rcp_f32 %s, %s" % (vr(T + 4), vr(T + 3)))
    for r in range(0, 20, 2):
        rnd2(a, NUM + r, NUM + r + 1, T + 5)
    for r in range(0, 20, 2):
        a(pk("mul", NUM + r, vr(NUM + r, 2), vr(T + 4, 2), bc=[1, 0]))
    for r in range(10):
        a("v_cvt_pk_bf16_f32 %s, %s, %s" % (vr(60 + r), vr(NUM + 2 * r), vr(NUM + 2 * r + 1)))
    a("v_mov_b32 v70, 0")
    a("v_mov_b32 v71, 0")
    a("s_lshl_b32 s48, s51, 5")
    a("s_add_u32 s48, s48, s52")
    a("s_mul_i32 s48, s48, 3072")
    a("v_mul_u32_u24 %s, %d, %s" % (vr(T + 6), 8 * 3072, vr(W2)))
    a("v_add3_u32 %s, %s, %s, s48" % (vr(T + 6), vr(T + 6), vr(T)))
    for c in range(3):
        a("buffer_store_dwordx4 %s, %s, s[32:35], 0 offen offset:%d sc1" % (vr(60 + 4 * c, 4), vr(T + 6), c * 1024))
    a("s_waitcnt vmcnt(0)")
    a("v_mov_b32 %s, 1" % vr(T + 3))
    a("s_lshl_b32 s48, s51, 7")
    a("s_lshl_b32 s49, s52, 4")
    a("s_add_u32 s48, s48, s49")
    a("s_lshl_b32 s49, s47, 2")
    a("s_add_u32 s48, s48, s49")
    a("v_mov_b32 %s, s48" % vr(T + 4))
    a("s_mov_b64 exec, 1")
    a("buffer_store_dword %s, %s, s[60:63], 0 offen sc1" % (vr(T + 3), vr(T + 4)))
    a("s_mov_b64 exec, -1")
    for r in range(80):
        a("v_mov_b32 %s, 0" % vr(ACC2 + r))
    stamp(a, 2)
    a.auto = False
    a.vm = []
    issued = ND
    for s in range(NSTEP):
        b = FR + (s % ND) * 36
        rem = issued - 1 - s
        if s == 12:
            stamp(a, 3)
        if s >= ND:
            a("s_waitcnt vmcnt(%d)" % (9 * rem))
        for t in range(5):
            for i in range(4):
                ac = ACC2 + (t * 4 + i) * 4
                mfma(a, ac, b + 4 * t, b + 20 + 4 * i, ac)
        if issued < NSTEP:
            if issued == 8:
                a("s_lshl_b32 s48, s51, 7")
                a("v_and_b32 %s, 31, %s" % (vr(T + 3), vr(L2)))
                a("v_lshlrev_b32 %s, 2, %s" % (vr(T + 3), vr(T + 3)))
                a("v_add_u32 %s, s48, %s" % (vr(T + 3), vr(T + 3)))
                a("buffer_load_dword %s, %s, s[60:63], 0 offen sc1" % (vr(T + 4), vr(T + 3)))
            if issued == 12:
                a("v_cmp_ne_u32 vcc, 1, %s" % vr(T + 4))
                a("s_cmp_eq_u64 vcc, 0")
                a("s_cbranch_scc1 Lk2_wf_ok")
                a("s_mov_b32 s49, 0")
                a.label("Lk2_wf")
                a.hist = []
                a("s_add_u32 s49, s49, 1")
                a("s_cmp_ge_u32 s49, 0x40000")
                a("s_cbranch_scc1 Lk2_wf_ok")
                a("s_sleep 1")
                a("buffer_load_dword %s, %s, s[60:63], 0 offen sc1" % (vr(T + 4), vr(T + 3)))
                a("s_waitcnt vmcnt(0)")
                a("v_cmp_ne_u32 vcc, 1, %s" % vr(T + 4))
                a("s_cmp_eq_u64 vcc, 0")
                a("s_cbranch_scc0 Lk2_wf")
                a.label("Lk2_wf_ok")
                a.hist = []
            loads(issued)
            issued += 1
    a.auto = True
    a.vm = []
    stamp(a, 4)
    a("s_barrier")
    a("v_and_b32 %s, 15, %s" % (vr(T), vr(L2)))
    a("v_lshrrev_b32 %s, 4, %s" % (vr(T + 2), vr(L2)))
    a("v_mul_u32_u24 %s, 320, %s" % (vr(T + 4), vr(T)))
    a("v_lshl_add_u32 %s, %s, 4, %s" % (vr(T + 4), vr(T + 2), vr(T + 4)))
    a("v_mul_u32_u24 %s, 20480, %s" % (vr(T + 5), vr(W2)))
    a("v_add_u32 %s, %s, %s" % (vr(T + 4), vr(T + 4), vr(T + 5)))
    for t in range(5):
        for i in range(4):
            ac = ACC2 + (t * 4 + i) * 4
            a("ds_write_b128 %s, %s offset:%d" % (vr(T + 4), vr(ac, 4), i * 16 * 320 + t * 64))
    make_srd(a, 28, 4, 2048 * 1280)
    make_srd(a, 32, 20, 2048 * 1280)
    a("s_mov_b32 s49, 0x1999999a")
    a("s_lshl_b32 s48, s51, 6")
    a("s_mul_i32 s50, s52, 160")
    for q in range(3):
        o = 10 * q
        a("v_add_u32 %s, %d, %s" % (vr(T), 256 * q, vr(TID)))
        a("v_mul_hi_u32 %s, %s, s49" % (vr(T + 1), vr(T)))
        a("v_mul_u32_u24 %s, 10, %s" % (vr(T + 2), vr(T + 1)))
        a("v_sub_u32 %s, %s, %s" % (vr(T + 2), vr(T), vr(T + 2)))
        a("v_mul_u32_u24 %s, 320, %s" % (vr(T + 3), vr(T + 1)))
        a("v_lshl_add_u32 %s, %s, 5, %s" % (vr(100 + q), vr(T + 2), vr(T + 3)))
        a("v_add_u32 %s, s48, %s" % (vr(T + 1), vr(T + 1)))
        a("v_mul_u32_u24 %s, 1280, %s" % (vr(T + 1), vr(T + 1)))
        a("v_lshl_add_u32 %s, %s, 4, %s" % (vr(T + 1), vr(T + 2), vr(T + 1)))
        a("v_add_u32 %s, s50, %s" % (vr(104 + q), vr(T + 1)))
        if q == 2:
            a("v_cmp_gt_u32 vcc, 640, %s" % vr(T))
            a("v_cndmask_b32 %s, 0, %s, vcc" % (vr(100 + q), vr(100 + q)))
            a("v_mov_b32 %s, 0x7fffff00" % vr(T + 4))
            a("v_cndmask_b32 %s, %s, %s, vcc" % (vr(104 + q), vr(T + 4), vr(104 + q)))
        a("buffer_load_dwordx4 %s, %s, s[28:31], 0 offen" % (vr(108 + 4 * q, 4), vr(104 + q)))
    a("s_waitcnt lgkmcnt(0)")
    a("s_barrier")
    for q in range(3):
        B = 128 + 32 * q
        for w in range(4):
            a("ds_read_b128 %s, %s offset:%d" % (vr(B + 8 * w, 4), vr(100 + q), w * 20480))
            a("ds_read_b128 %s, %s offset:%d" % (vr(B + 8 * w + 4, 4), vr(100 + q), w * 20480 + 16))
    for q in range(3):
        B = 128 + 32 * q
        for r in range(0, 8, 2):
            a(pk("add", B + r, vr(B + r, 2), vr(B + 8 + r, 2)))
            a(pk("add", B + 16 + r, vr(B + 16 + r, 2), vr(B + 24 + r, 2)))
        for r in range(0, 8, 2):
            a(pk("add", B + r, vr(B + r, 2), vr(B + 16 + r, 2)))
        for r in range(4):
            a("v_lshlrev_b32 %s, 16, %s" % (vr(B + 8 + 2 * r), vr(108 + 4 * q + r)))
            a("v_and_b32 %s, 0xffff0000, %s" % (vr(B + 9 + 2 * r), vr(108 + 4 * q + r)))
        for r in range(0, 8, 2):
            a(pk("add", B + r, vr(B + r, 2), vr(B + 8 + r, 2)))
        for r in range(4):
            a("v_cvt_pk_bf16_f32 %s, %s, %s" % (vr(B + 16 + r), vr(B + 2 * r), vr(B + 2 * r + 1)))
        a("buffer_store_dwordx4 %s, %s, s[32:35], 0 offen" % (vr(B + 16, 4), vr(104 + q)))
    a("s_waitcnt vmcnt(0)")
    dump_stamps(a, 6, 0x1210000)
    a.label("Lk2_exit")
    a("s_endpgm")


def kd(name, vgpr):
    return """.amdhsa_kernel %s
  .amdhsa_next_free_vgpr %d
  .amdhsa_next_free_sgpr 96
  .amdhsa_accum_offset %d
  .amdhsa_group_segment_fixed_size 0
  .amdhsa_kernarg_size 88
  .amdhsa_user_sgpr_count 2
  .amdhsa_user_sgpr_kernarg_segment_ptr 1
  .amdhsa_system_sgpr_workgroup_id_x 1
  .amdhsa_float_denorm_mode_32 3
.end_amdhsa_kernel
""" % (name, vgpr, (vgpr + 3) // 4 * 4)


def main():
    out = []
    out.append("; @launch kernel=k1_kernel grid=(256,1,1) block=(512,1,1) lds=%d" % K1_LDS)
    out.append("; @launch kernel=k2_kernel grid=(256,1,1) block=(256,1,1) lds=%d" % K2_LDS)
    out.append('.amdgcn_target "amdgcn-amd-amdhsa--gfx950"')
    out.append(".text")
    for nm, g in (("k1_kernel", gen_k1), ("k2_kernel", gen_k2)):
        a = Asm()
        g(a)
        out.append(".globl %s" % nm)
        out.append(".p2align 8")
        out.append(".type %s,@function" % nm)
        out.append(a.text())
    out.append('.section .rodata,"a"')
    for nm, v in (("k1_kernel", 256), ("k2_kernel", 256)):
        out.append(".p2align 6")
        out.append(kd(nm, v))
    path = os.environ.get("GENOUT", "cdna_kernels/%s.s" % NAME)
    open(path, "w").write("\n".join(out))
    print("wrote", path, sum(len(x) for x in out))


if __name__ == "__main__":
    main()
```

```python
import sys, os, struct
sys.path.insert(0, os.path.dirname(os.path.abspath(__file__)))
from asmdsl import Asm, vr, sr

FL = set(os.environ.get("GENFLAGS", "").split(","))
NAME = "parallel_sum__linear_kernel_hedgehog__glu_gated_geglu__prompt"

WS_HF = 0x000000
WS_PQF = 0x600000
WS_OF = 0xB00000
WS_W2F = 0xE00000
WS_KVA = 0x1100000
WS_ST = 0x1120000
WS_CS = 0x1128000
WS_FLG = 0x1130000
HF_BYTES = 128 * 48 * 1024
PQF_BYTES = 128 * 40 * 1024
OF_BYTES = 128 * 24 * 1024
W2F_BYTES = 8 * 72 * 5 * 1024
KVA_BYTES = 32 * 840 * 4
ST_BYTES = 2048 * 8
CS_BYTES = 4992 * 4

WSLOT = 24576
LDS_X = 4 * WSLOT
LDS_WPHI = LDS_X + 49152
LDS_ZERO = LDS_WPHI + 12800
LDS_DUMMY = LDS_ZERO + 64
K1_LDS = 163840
LOG2E = 1.4426950408889634
NPROD = 220


def f2u(x):
    return struct.unpack("<I", struct.pack("<f", x))[0]


def stamp(a, k):
    if "ts" not in FL:
        return
    a("s_waitcnt lgkmcnt(0)")
    a("s_memtime s[%d:%d]" % (72 + 2 * k, 73 + 2 * k))
    a("s_waitcnt lgkmcnt(0)")


def dump_stamps(a, n, base):
    if "ts" not in FL:
        return
    stamp(a, n - 1)
    a("s_add_u32 s56, s24, 0x%x" % base)
    a("s_addc_u32 s57, s25, 0")
    a("s_and_b32 s57, s57, 0xffff")
    a("s_mov_b32 s58, 0x10000")
    a("s_mov_b32 s59, 0x00020000")
    a("s_cmp_lg_u32 s47, 0")
    lab = "Lts%d" % len(a.lines)
    a("s_cbranch_scc1 %s" % lab)
    a("s_lshl_b32 s48, s2, 7")
    a("v_mov_b32 v1, s48")
    a("s_mov_b64 exec, 1")
    for k in range(n):
        a("v_mov_b32 v2, s%d" % (72 + 2 * k))
        a("v_mov_b32 v3, s%d" % (73 + 2 * k))
        a("buffer_store_dwordx2 v[2:3], v1, s[56:59], 0 offen offset:%d" % (8 * k))
    a("s_mov_b64 exec, -1")
    a.label(lab)


def load_kernargs(a):
    a("s_load_dwordx16 s[4:19], s[0:1], 0")
    a("s_load_dwordx4 s[20:23], s[0:1], 64")
    a("s_load_dwordx2 s[24:25], s[0:1], 80")


def make_srd(a, d, base, nbytes, off=0):
    if off:
        a("s_add_u32 s%d, s%d, 0x%x" % (d, base, off))
        a("s_addc_u32 s%d, s%d, 0" % (d + 1, base + 1))
        a("s_and_b32 s%d, s%d, 0xffff" % (d + 1, d + 1))
    else:
        a("s_mov_b32 s%d, s%d" % (d, base))
        a("s_and_b32 s%d, s%d, 0xffff" % (d + 1, base + 1))
    a("s_mov_b32 s%d, 0x%x" % (d + 2, nbytes))
    a("s_mov_b32 s%d, 0x00020000" % (d + 3))


def swap_add(a, x, t1, t2, which):
    a("v_mov_b32 %s, %s" % (vr(t1), vr(x)))
    a("v_mov_b32 %s, %s" % (vr(t2), vr(x)))
    a("v_permlane%d_swap_b32 %s, %s" % (which, vr(t1), vr(t2)))
    a("v_add_f32 %s, %s, %s" % (vr(x), vr(t1), vr(t2)))


def rnd2(a, x, y, t):
    a("v_cvt_pk_bf16_f32 %s, %s, %s" % (vr(t), vr(x), vr(y)))
    a("v_lshlrev_b32 %s, 16, %s" % (vr(x), vr(t)))
    a("v_and_b32 %s, 0xffff0000, %s" % (vr(y), vr(t)))


def split3(a, c, d0, t1, t2, t3):
    a("v_cvt_pk_bf16_f32 %s, %s, %s" % (vr(t1), vr(c), vr(c)))
    a("v_lshlrev_b32 %s, 16, %s" % (vr(t3), vr(t1)))
    a("v_sub_f32 %s, %s, %s" % (vr(c), vr(c), vr(t3)))
    a("v_cvt_pk_bf16_f32 %s, %s, %s" % (vr(t2), vr(c), vr(c)))
    a("v_lshlrev_b32 %s, 16, %s" % (vr(t3), vr(t2)))
    a("v_sub_f32 %s, %s, %s" % (vr(c), vr(c), vr(t3)))
    a("v_cvt_pk_bf16_f32 %s, %s, %s" % (vr(t3), vr(c), vr(c)))
    a("v_and_b32 %s, 0xffff, %s" % (vr(t1), vr(t1)))
    a("v_lshl_or_b32 %s, %s, 16, %s" % (vr(t1), vr(t2), vr(t1)))
    a("v_and_b32 %s, 0xffff, %s" % (vr(t3), vr(t3)))
    a("v_cndmask_b32 %s, 0, %s, vcc" % (vr(d0), vr(t1)))
    a("v_cndmask_b32 %s, 0, %s, vcc" % (vr(d0 + 1), vr(t3)))
    a("v_mov_b32 %s, 0" % vr(d0 + 2))
    a("v_mov_b32 %s, 0" % vr(d0 + 3))


class Rec:
    def __init__(self):
        self.l = []

    def __call__(self, t):
        self.l.append(t)

    def comment(self, t):
        pass


def merge(a, *recs):
    ls = [list(r.l) for r in recs]
    n = max(len(l) for l in ls)
    idx = [0] * len(ls)
    for k in range(1, n + 1):
        for q, l in enumerate(ls):
            tgt = (len(l) * k + n - 1) // n
            while idx[q] < min(tgt, len(l)):
                a(l[idx[q]])
                idx[q] += 1


def mfma(a, d, A, B, C):
    a("v_mfma_f32_16x16x32_bf16 %s, %s, %s, %s" % (vr(d, 4), vr(A, 4), vr(B, 4), "0" if C is None else vr(C, 4)))


ACC = 0
FB = 96
VOFFW = 192
VOFFX = 195
VXB = 197
VWB = 199
VL = 207
VW = 208
VTID = 209
T0 = 210
RS = 230
MF = 238


def signal(a, L, target_srd):
    a("s_cmp_ge_u32 s2, %d" % NPROD)
    a("s_cbranch_scc1 %s" % L)
    a("s_cmp_lg_u32 s47, 0")
    a("s_cbranch_scc1 %s" % L)
    a("v_mov_b32 %s, 1" % vr(T0))
    a("v_mov_b32 %s, 0" % vr(T0 + 1))
    a("s_mov_b64 exec, 1")
    a("buffer_atomic_add %s, %s, s[%d:%d], 0 offen sc1" % (vr(T0), vr(T0 + 1), target_srd, target_srd + 3))
    a("s_mov_b64 exec, -1")
    a.label(L)
    a.hist = []


def prepass(a, L):
    make_srd(a, 60, 22, 256)
    a("s_cmp_lg_u32 s2, %d" % NPROD)
    a("s_cbranch_scc1 %spp_nf" % L)
    make_srd(a, 56, 24, 4096, WS_FLG)
    a("v_lshlrev_b32 v1, 4, %s" % vr(VTID))
    for r in range(4):
        a("v_mov_b32 %s, 0" % vr(8 + r))
    a("buffer_store_dwordx4 v[8:11], v1, s[56:59], 0 offen")
    a.label(L + "pp_nf")
    a.hist = []
    a("s_cmp_ge_u32 s2, %d" % NPROD)
    a("s_cbranch_scc1 %spp_done" % L)
    a("s_cmp_ge_u32 s2, 206")
    a("s_cbranch_scc1 %spp_zero" % L)
    a("s_cmp_ge_u32 s2, 78")
    a("s_cbranch_scc1 %spp_stats" % L)
    make_srd(a, 56, 6, 640 * 3840)
    a("s_movk_i32 s54, 3840")
    a("s_lshl_b32 s55, s2, 7")
    a("s_cmp_lt_u32 s2, 30")
    a("s_cbranch_scc1 %spp_cs" % L)
    make_srd(a, 56, 14, 640 * 3072)
    a("s_movk_i32 s54, 3072")
    a("s_sub_u32 s55, s55, %d" % (30 * 128))
    a("s_cmp_lt_u32 s2, 54")
    a("s_cbranch_scc1 %spp_cs" % L)
    make_srd(a, 56, 16, 640 * 3072)
    a("s_sub_u32 s55, s55, %d" % (24 * 128))
    a.label(L + "pp_cs")
    a.hist = []
    a("v_and_b32 v1, 31, %s" % vr(VTID))
    a("v_lshrrev_b32 v2, 5, %s" % vr(VTID))
    a("v_mul_lo_u32 v2, v2, s54")
    a("v_lshl_add_u32 v2, v1, 2, v2")
    a("v_add_u32 v2, s55, v2")
    a("s_lshl_b32 s54, s54, 4")
    a("s_mov_b32 s55, 0")
    for i in range(40):
        a("buffer_load_dword %s, v2, s[56:59], s55 offen" % vr(8 + i))
        if i < 39:
            a("s_add_u32 s55, s55, s54")
    a("v_mov_b32 v4, 0")
    a("v_mov_b32 v5, 0")
    for i in range(40):
        a("v_lshlrev_b32 v6, 16, %s" % vr(8 + i))
        a("v_and_b32 v7, 0xffff0000, %s" % vr(8 + i))
        a("v_pk_add_f32 v[4:5], v[4:5], v[6:7]")
    swap_add(a, 4, 6, 7, 32)
    swap_add(a, 5, 6, 7, 32)
    a("v_lshlrev_b32 v1, 3, v1")
    a("v_lshl_add_u32 v3, %s, 8, v1" % vr(VW))
    a("v_add_u32 v3, %d, v3" % (3 * WSLOT))
    a("ds_write_b64 v3, v[4:5]")
    a("s_waitcnt lgkmcnt(0)")
    a("s_barrier")
    a("v_add_u32 v3, %d, v1" % (3 * WSLOT))
    for w in range(8):
        a("ds_read_b64 %s, v3 offset:%d" % (vr(8 + 2 * w, 2), w * 256))
    for w in range(1, 8):
        a("v_pk_add_f32 v[8:9], v[8:9], %s" % vr(8 + 2 * w, 2))
    make_srd(a, 56, 24, CS_BYTES, WS_CS)
    a("s_lshl_b32 s55, s2, 8")
    a("v_add_u32 v1, s55, v1")
    a("v_mov_b32 v3, 0x7fffff00")
    a("v_cmp_gt_u32 vcc, 32, %s" % vr(VTID))
    a("v_cndmask_b32 v1, v3, v1, vcc")
    a("buffer_store_dwordx2 v[8:9], v1, s[56:59], 0 offen sc1")
    a("s_branch %spp_sig" % L)
    a.label(L + "pp_stats")
    a.hist = []
    a("s_sub_u32 s54, s2, 78")
    a("s_lshl_b32 s54, s54, 4")
    a("v_lshrrev_b32 v1, 5, %s" % vr(VTID))
    a("v_add_u32 v1, s54, v1")
    a("v_and_b32 v2, 31, %s" % vr(VTID))
    a("v_mul_u32_u24 v3, 40, v2")
    a("s_movk_i32 s55, 1280")
    a("v_mul_lo_u32 v4, v1, s55")
    a("v_add_u32 v3, v3, v4")
    a("buffer_load_dwordx4 v[8:11], v3, s[28:31], 0 offen")
    a("buffer_load_dwordx4 v[12:15], v3, s[28:31], 0 offen offset:16")
    a("buffer_load_dwordx2 v[16:17], v3, s[28:31], 0 offen offset:32")
    for r in range(4):
        a("v_mov_b32 %s, 0" % vr(20 + r))
    for i in range(10):
        a("v_lshlrev_b32 v6, 16, %s" % vr(8 + i))
        a("v_and_b32 v7, 0xffff0000, %s" % vr(8 + i))
        a("v_pk_add_f32 v[20:21], v[20:21], v[6:7]")
        a("v_pk_fma_f32 v[22:23], v[6:7], v[6:7], v[22:23]")
    a("v_add_f32 v20, v20, v21")
    a("v_add_f32 v22, v22, v23")
    for ro in (8, 4, 2, 1):
        a("v_add_f32_dpp v20, v20, v20 row_ror:%d row_mask:0xf bank_mask:0xf" % ro)
        a("v_add_f32_dpp v22, v22, v22 row_ror:%d row_mask:0xf bank_mask:0xf" % ro)
    swap_add(a, 20, 6, 7, 16)
    swap_add(a, 22, 6, 7, 16)
    a("s_mov_b32 s55, 0x%x" % f2u(1.0 / 640.0))
    a("v_mul_f32 v20, s55, v20")
    a("v_mul_f32 v22, s55, v22")
    a("v_fma_f32 v22, -v20, v20, v22")
    a("v_max_f32 v22, 0, v22")
    a("v_cvt_pk_bf16_f32 v6, v20, v22")
    a("v_lshlrev_b32 v9, 16, v6")
    a("v_and_b32 v7, 0xffff0000, v6")
    a("v_add_f32 v7, 0x%x, v7" % f2u(1e-5))
    a("v_cvt_pk_bf16_f32 v7, v7, v7")
    a("v_lshlrev_b32 v7, 16, v7")
    a("v_sqrt_f32 v7, v7")
    a("v_cvt_pk_bf16_f32 v7, v7, v7")
    a("v_lshlrev_b32 v7, 16, v7")
    a("v_rcp_f32 v8, v7")
    make_srd(a, 56, 24, ST_BYTES, WS_ST)
    a("v_lshlrev_b32 v1, 3, v1")
    a("v_mov_b32 v3, 0x7fffff00")
    a("v_cmp_eq_u32 vcc, 0, v2")
    a("v_cndmask_b32 v1, v3, v1, vcc")
    a("buffer_store_dwordx2 v[8:9], v1, s[56:59], 0 offen sc1")
    a("s_branch %spp_sig" % L)
    a.label(L + "pp_zero")
    a.hist = []
    make_srd(a, 56, 24, KVA_BYTES, WS_KVA)
    a("s_sub_u32 s54, s2, 206")
    a("s_mul_i32 s54, s54, 7680")
    a("v_lshlrev_b32 v1, 4, %s" % vr(VTID))
    a("v_add_u32 v1, s54, v1")
    a("v_mov_b32 v3, 0x7fffff00")
    a("v_cmp_gt_u32 vcc, 480, %s" % vr(VTID))
    a("v_cndmask_b32 v1, v3, v1, vcc")
    for r in range(4):
        a("v_mov_b32 %s, 0" % vr(8 + r))
    a("buffer_store_dwordx4 v[8:11], v1, s[56:59], 0 offen sc1")
    a.label(L + "pp_sig")
    a.label(L + "pp_done")
    a.hist = []
    a.vm = []
    a.lg = []


def wait_flag(a, L, srd, off, target):
    a("v_mov_b32 %s, %d" % (vr(T0), off))
    a("s_mov_b32 s49, 0")
    a.label(L)
    a.hist = []
    a("buffer_load_dword %s, %s, s[%d:%d], 0 offen sc1" % (vr(T0 + 1), vr(T0), srd, srd + 3))
    a("s_waitcnt vmcnt(0)")
    a("v_readfirstlane_b32 s48, %s" % vr(T0 + 1))
    a("s_cmp_ge_u32 s48, %d" % target)
    a("s_cbranch_scc1 %s_ok" % L)
    a("s_sleep 4")
    a("s_add_u32 s49, s49, 1")
    a("s_cmp_lt_u32 s49, 0x40000")
    a("s_cbranch_scc1 %s" % L)
    a.label(L + "_ok")
    a.hist = []


def k1_path(a, T):
    NI = {"GU": 4, "KV": 2, "Q": 2}[T]
    NT = {"GU": 6, "KV": 10, "Q": 5}[T]
    HALF = {"GU": 3, "KV": 5, "Q": 5}[T]
    rowb = 3072 if T == "GU" else 3840
    L = "L%s_" % T
    nacc = NT * NI * 4

    def acc(t, i):
        return ACC + (t * NI + i) * 4

    a.comment("==== K1 path %s" % T)
    stamp(a, 0)
    a("v_mov_b32 %s, v0" % vr(VTID))
    a("v_and_b32 %s, 63, v0" % vr(VL))
    a("v_lshrrev_b32 %s, 6, v0" % vr(VW))
    a("v_readfirstlane_b32 s47, %s" % vr(VW))
    a("s_lshl_b32 s46, s47, 10")
    make_srd(a, 28, 4, 2048 * 1280)
    a("v_lshrrev_b32 %s, 3, %s" % (vr(T0), vr(VL)))
    a("v_and_b32 %s, 7, %s" % (vr(T0 + 1), vr(VL)))
    a("v_xor_b32 %s, %s, %s" % (vr(T0 + 2), vr(T0 + 1), vr(T0)))
    a("s_lshl_b32 s48, s51, 7")
    a("v_lshl_add_u32 %s, %s, 3, %s" % (vr(T0 + 3), vr(VW), vr(T0)))
    a("v_add_u32 %s, s48, %s" % (vr(T0 + 3), vr(T0 + 3)))
    a("s_movk_i32 s49, 1280")
    a("v_mul_lo_u32 %s, %s, s49" % (vr(T0 + 3), vr(T0 + 3)))
    a("v_lshl_add_u32 %s, %s, 4, %s" % (vr(VOFFX), vr(T0 + 2), vr(T0 + 3)))
    a("v_add_u32 %s, %d, %s" % (vr(VOFFX + 1), 64 * 1280, vr(VOFFX)))
    a("v_and_b32 %s, 3, %s" % (vr(T0 + 3), vr(VW)))
    a("v_bfe_u32 %s, %s, 1, 1" % (vr(T0 + 4), vr(T0)))
    a("v_and_b32 %s, 1, %s" % (vr(T0 + 5), vr(T0 + 3)))
    a("v_lshl_add_u32 %s, %s, 1, %s" % (vr(T0 + 4), vr(T0 + 5), vr(T0 + 4)))
    a("v_lshlrev_b32 %s, 1, %s" % (vr(T0 + 4), vr(T0 + 4)))
    a("v_xor_b32 %s, %s, %s" % (vr(T0 + 4), vr(T0 + 1), vr(T0 + 4)))
    a("v_lshl_add_u32 %s, %s, 3, %s" % (vr(T0 + 5), vr(T0 + 3), vr(T0)))
    a("s_movk_i32 s49, %d" % rowb)
    a("v_mul_lo_u32 %s, %s, s49" % (vr(T0 + 5), vr(T0 + 5)))
    a("v_lshl_add_u32 %s, %s, 4, %s" % (vr(T0 + 5), vr(T0 + 4), vr(T0 + 5)))
    a("v_lshrrev_b32 %s, 2, %s" % (vr(T0 + 6), vr(VW)))
    a("v_lshl_add_u32 %s, %s, 7, %s" % (vr(T0 + 5), vr(T0 + 6), vr(T0 + 5)))
    if T == "GU":
        a("s_mul_i32 s48, s52, 384")
        a("v_add_u32 %s, s48, %s" % (vr(VOFFW), vr(T0 + 5)))
        a("v_mov_b32 %s, 256" % vr(T0 + 7))
        a("v_mov_b32 %s, 0xffffff80" % vr(T0 + 8))
        a("v_cmp_eq_u32 vcc, 0, %s" % vr(T0 + 6))
        a("v_cndmask_b32 %s, %s, %s, vcc" % (vr(T0 + 7), vr(T0 + 8), vr(T0 + 7)))
        a("v_add_u32 %s, %s, %s" % (vr(VOFFW + 1), vr(T0 + 7), vr(VOFFW)))
        a("v_add_u32 %s, 128, %s" % (vr(VOFFW + 2), vr(VOFFW)))
        make_srd(a, 32, 14, 640 * 3072)
        make_srd(a, 36, 16, 640 * 3072)
        make_srd(a, 40, 14, 640 * 3072)
        a("s_cmp_lt_u32 s47, 4")
        a("s_cselect_b32 s40, s40, s36")
        a("s_cselect_b32 s41, s41, s37")
        srdw = [32, 40, 36]
    else:
        a("s_mul_i32 s48, s52, 80")
        a("s_and_b32 s48, s48, 0xffc0")
        a("s_lshl_b32 s48, s48, 1")
        a("v_add_u32 %s, s48, %s" % (vr(VOFFW), vr(T0 + 5)))
        a("v_add_u32 %s, 1280, %s" % (vr(VOFFW + 1), vr(VOFFW)))
        a("v_add_u32 %s, 2560, %s" % (vr(VOFFW + 2), vr(VOFFW)))
        make_srd(a, 32, 6, 640 * 3840)
        srdw = [32, 32, 32]
    a("s_mov_b32 s44, 0")
    a("s_mov_b32 s45, 0")

    if T == "GU":
        wmsh, wnmask = 2, 3
    else:
        wmsh, wnmask = 0, 0
    a("v_and_b32 %s, 15, %s" % (vr(T0), vr(VL)))
    a("v_lshrrev_b32 %s, 4, %s" % (vr(T0 + 1), vr(VL)))
    a("v_lshrrev_b32 %s, %d, %s" % (vr(T0 + 3), wmsh, vr(VW)))
    if T != "GU":
        a("v_and_b32 %s, 3, %s" % (vr(T0 + 3), vr(T0 + 3)))
    a("v_and_b32 %s, %d, %s" % (vr(T0 + 4), wnmask, vr(VW)))
    a("v_and_b32 %s, 7, %s" % (vr(T0 + 5), vr(T0)))
    a("v_mul_u32_u24 %s, %d, %s" % (vr(T0 + 6), NI * 2048, vr(T0 + 3)))
    a("v_lshl_add_u32 %s, %s, 7, %s" % (vr(T0 + 6), vr(T0), vr(T0 + 6)))
    a("v_add_u32 %s, %d, %s" % (vr(T0 + 6), LDS_X, vr(T0 + 6)))
    for pk in range(2):
        a("v_add_u32 %s, %d, %s" % (vr(T0 + 7), 4 * pk, vr(T0 + 1)))
        a("v_xor_b32 %s, %s, %s" % (vr(T0 + 7), vr(T0 + 7), vr(T0 + 5)))
        a("v_lshl_add_u32 %s, %s, 4, %s" % (vr(VXB + pk), vr(T0 + 7), vr(T0 + 6)))
    a("v_bfe_u32 %s, %s, 3, 1" % (vr(T0 + 5), vr(T0)))
    a("v_and_b32 %s, 1, %s" % (vr(T0 + 6), vr(T0 + 1)))
    a("v_lshl_add_u32 %s, %s, 1, %s" % (vr(T0 + 5), vr(T0 + 6), vr(T0 + 5)))
    a("v_lshrrev_b32 %s, 2, %s" % (vr(T0 + 6), vr(T0)))
    a("v_lshl_add_u32 %s, %s, 3, %s" % (vr(T0 + 6), vr(T0 + 1), vr(T0 + 6)))
    a("v_lshlrev_b32 %s, 7, %s" % (vr(T0 + 6), vr(T0 + 6)))
    a("v_and_b32 %s, 3, %s" % (vr(T0 + 7), vr(T0)))
    a("v_lshl_add_u32 %s, %s, 3, %s" % (vr(T0 + 6), vr(T0 + 7), vr(T0 + 6)))
    a("v_mul_u32_u24 %s, %d, %s" % (vr(T0 + 7), HALF, vr(T0 + 4)))
    if T != "GU":
        a("s_mul_i32 s48, s52, 5")
        a("s_and_b32 s48, s48, 3")
        if T == "KV":
            a("s_add_u32 s48, s48, 8")
        a("v_add_u32 %s, s48, %s" % (vr(T0 + 7), vr(T0 + 7)))
    for j in range(4):
        a("v_add_u32 %s, %d, %s" % (vr(T0 + 8), j, vr(T0 + 7)))
        a("v_and_b32 %s, 3, %s" % (vr(T0 + 9), vr(T0 + 8)))
        a("v_xor_b32 %s, %s, %s" % (vr(T0 + 9), vr(T0 + 9), vr(T0 + 5)))
        a("v_lshl_add_u32 %s, %s, 5, %s" % (vr(T0 + 9), vr(T0 + 9), vr(T0 + 6)))
        a("v_lshrrev_b32 %s, 2, %s" % (vr(T0 + 8), vr(T0 + 8)))
        a("v_lshl_add_u32 %s, %s, 12, %s" % (vr(VWB + 2 * j), vr(T0 + 8), vr(T0 + 9)))
        a("v_add_u32 %s, 0x10000, %s" % (vr(VWB + 2 * j + 1), vr(VWB + 2 * j)))

    if T != "GU":
        nb = 4 * 800
        make_srd(a, 36, 8, 32 * 800)
        a("s_mul_i32 s48, s52, %d" % nb)
        a("v_lshlrev_b32 %s, 4, %s" % (vr(T0), vr(VTID)))
        a("v_add_u32 %s, s48, %s" % (vr(T0 + 1), vr(T0)))
        a("buffer_load_dwordx4 v[96:99], %s, s[36:39], 0 offen" % vr(T0 + 1))
        if nb > 8192:
            a("v_add_u32 %s, 8192, %s" % (vr(T0 + 2), vr(T0 + 1)))
            a("buffer_load_dwordx4 v[100:103], %s, s[36:39], 0 offen" % vr(T0 + 2))

    lab = [0]

    def loadW(slot):
        for i in range(3):
            a("s_add_u32 m0, s46, 0x%x" % (slot * WSLOT + i * 8192))
            a("buffer_load_dwordx4 %s, s[%d:%d], s45 offen lds" % (vr(VOFFW + i), srdw[i], srdw[i] + 3))
        a("s_add_u32 s45, s45, %d" % (32 * rowb))

    def loadX(slot):
        for i in range(2):
            a("s_add_u32 m0, s46, 0x%x" % (LDS_X + slot * 16384 + i * 8192))
            a("buffer_load_dwordx4 %s, s[28:31], s44 offen lds" % vr(VOFFX + i))
        a("s_add_u32 s44, s44, 128")

    nW = 3
    groups = []

    def need(names):
        if not any(n in names for (n, c) in groups):
            return 0
        last = max(i for i, (n, c) in enumerate(groups) if n in names)
        return sum(c for (n, c) in groups[last + 1:])

    loadX(0); groups.append(("x0", 2))
    loadW(0); groups.append(("w0", nW))
    loadX(1); groups.append(("x1", 2))
    loadW(1); groups.append(("w1", nW))
    loadW(2); groups.append(("w2", nW))
    if T != "GU":
        nb = 4 * 800
        a("s_waitcnt vmcnt(%d)" % (4 + 3 * nW))
        a.vm = []
        a("v_lshlrev_b32 %s, 4, %s" % (vr(T0), vr(VTID)))
        a("v_add_u32 %s, %d, %s" % (vr(T0 + 1), LDS_WPHI, vr(T0)))
        a("v_mov_b32 %s, %d" % (vr(T0 + 3), LDS_DUMMY))
        if nb > 8192:
            a("ds_write_b128 %s, v[96:99]" % vr(T0 + 1))
            a("v_add_u32 %s, 8192, %s" % (vr(T0 + 2), vr(T0 + 1)))
            a("v_cmp_gt_u32 vcc, %d, %s" % (nb - 8192, vr(T0)))
            a("v_cndmask_b32 %s, %s, %s, vcc" % (vr(T0 + 2), vr(T0 + 3), vr(T0 + 2)))
            a("ds_write_b128 %s, v[100:103]" % vr(T0 + 2))
        else:
            a("v_cmp_gt_u32 vcc, %d, %s" % (nb, vr(T0)))
            a("v_cndmask_b32 %s, %s, %s, vcc" % (vr(T0 + 1), vr(T0 + 3), vr(T0 + 1)))
            a("ds_write_b128 %s, v[96:99]" % vr(T0 + 1))
        for r in range(4):
            a("v_mov_b32 %s, 0" % vr(104 + r))
        a("v_and_b32 %s, 3, %s" % (vr(T0), vr(VTID)))
        a("v_lshlrev_b32 %s, 4, %s" % (vr(T0), vr(T0)))
        a("v_add_u32 %s, %d, %s" % (vr(T0), LDS_ZERO, vr(T0)))
        a("ds_write_b128 %s, v[104:107]" % vr(T0))
        a("s_waitcnt lgkmcnt(0)")
    a.vm = []
    stamp(a, 1)
    prepass(a, L)
    stamp(a, 2)
    for r in range(nacc):
        a("v_mov_b32 %s, 0" % vr(ACC + r))

    CSR = MF

    def stats_loads():
        a("v_readfirstlane_b32 s48, %s" % vr(T0 + 1))
        a("s_cmp_ge_u32 s48, %d" % NPROD)
        a("s_cbranch_scc1 %swf_ok" % L)
        wait_flag(a, L + "wf", 60, 0, NPROD)
        make_srd(a, 56, 24, ST_BYTES, WS_ST)
        make_srd(a, 64, 24, CS_BYTES, WS_CS)
        a("v_and_b32 %s, 15, %s" % (vr(T0), vr(VL)))
        a("v_lshrrev_b32 %s, %d, %s" % (vr(T0 + 3), wmsh, vr(VW)))
        if T != "GU":
            a("v_and_b32 %s, 3, %s" % (vr(T0 + 3), vr(T0 + 3)))
        a("v_and_b32 %s, %d, %s" % (vr(T0 + 4), wnmask, vr(VW)))
        a("v_mul_u32_u24 %s, %d, %s" % (vr(T0 + 5), NI * 16, vr(T0 + 3)))
        a("v_add_u32 %s, %s, %s" % (vr(T0 + 5), vr(T0 + 5), vr(T0)))
        a("s_lshl_b32 s48, s51, 7")
        a("v_add_u32 %s, s48, %s" % (vr(T0 + 5), vr(T0 + 5)))
        a("v_lshlrev_b32 %s, 3, %s" % (vr(T0 + 5), vr(T0 + 5)))
        for i in range(NI):
            a("buffer_load_dwordx2 %s, %s, s[56:59], 0 offen offset:%d sc1" % (vr(RS + 2 * i, 2), vr(T0 + 5), 128 * i))
        if T == "GU":
            a("s_mul_i32 s48, s52, 192")
            a("s_add_u32 s48, s48, 1920")
            second = 1536
        elif T == "KV":
            a("s_mul_i32 s48, s52, 80")
            a("s_add_u32 s48, s48, 640")
            second = 640
        else:
            a("s_mul_i32 s48, s52, 80")
            second = 0
        a("v_mul_u32_u24 %s, %d, %s" % (vr(T0 + 6), 16 * HALF, vr(T0 + 4)))
        a("v_add3_u32 %s, %s, %s, s48" % (vr(T0 + 6), vr(T0 + 6), vr(T0)))
        a("v_lshlrev_b32 %s, 2, %s" % (vr(T0 + 6), vr(T0 + 6)))
        if second:
            a("v_add_u32 %s, %d, %s" % (vr(T0 + 7), second * 4, vr(T0 + 6)))
        for t in range(NT):
            j, up = t % HALF, t // HALF
            a("buffer_load_dword %s, %s, s[64:67], 0 offen offset:%d sc1" % (vr(CSR + t), vr(T0 + 7 if up else T0 + 6), 64 * j))

    FSZ = 48

    def rdfrags(s):
        fb = FB + (s & 1) * FSZ
        wb = (s & 3) * WSLOT
        xb = ((s >> 1) % 3) * 16384

        def rdx(i):
            a("ds_read_b128 %s, %s offset:%d" % (vr(fb + 4 * i, 4), vr(VXB + (s & 1)), xb + i * 2048))

        def rdw(t):
            j, up = t % HALF, t // HALF
            off = wb + (j >> 2) * 4096 + up * (12288 if T == "GU" else 8192)
            for h in range(2):
                o = off + h * 512
                a("ds_read_b64_tr_b16 %s, %s offset:%d" % (vr(fb + 4 * NI + 4 * t + 2 * h, 2), vr(VWB + 2 * (j & 3) + (o >> 16)), o & 0xFFFF))
        rdx(0)
        rdw(0)
        for i in range(1, NI):
            rdx(i)
        for t in range(1, NT):
            rdw(t)

    def mfmas(s):
        fb = FB + (s & 1) * FSZ
        for t in range(NT):
            for i in range(NI):
                if T == "KV" and t >= 5:
                    mfma(a, acc(t, i), fb + 4 * i, fb + 4 * NI + 4 * t, acc(t, i))
                else:
                    mfma(a, acc(t, i), fb + 4 * NI + 4 * t, fb + 4 * i, acc(t, i))

    a("s_waitcnt vmcnt(%d)" % need(["x0", "w0"]))
    a("s_barrier")
    a.vm = []
    rdfrags(0)
    for s in range(20):
        if s < 19:
            a("s_waitcnt vmcnt(%d)" % need(["x%d" % ((s + 1) >> 1), "w%d" % (s + 1)]))
            if "nobar" not in FL or s == 2:
                a("s_barrier")
            if s == 2:
                signal(a, L + "sig", 60)
            if s % 2 == 0 and s // 2 + 2 <= 9 and "noload" not in FL:
                loadX((s // 2 + 2) % 3); groups.append(("x%d" % (s // 2 + 2), 2))
            if s + 3 <= 19 and "noload" not in FL:
                loadW((s + 3) & 3); groups.append(("w%d" % (s + 3), nW))
            if s == 10:
                a("v_mov_b32 %s, 0" % vr(T0))
                a("buffer_load_dword %s, %s, s[60:63], 0 offen sc1" % (vr(T0 + 1), vr(T0)))
                groups.append(("fl", 1))
            if s == 15:
                stats_loads()
                groups.append(("st", NI + NT))
            a.vm = []
            if "nords" not in FL or s < 1:
                rdfrags(s + 1)
        mfmas(s)
    if "noepi" in FL:
        a("s_endpgm")
        return

    if T != "KV":
        a("s_barrier")
    stamp(a, 3)
    a("s_waitcnt vmcnt(0)")
    stamp(a, 4)
    WF = 96
    MFR = 136
    a("v_cmp_gt_u32 vcc, 16, %s" % vr(VL))
    for i in range(NI):
        a("v_lshrrev_b32 %s, 16, %s" % (vr(T0 + 2), vr(RS + 2 * i + 1)))
        a("v_xor_b32 %s, 0x8000, %s" % (vr(T0 + 2), vr(T0 + 2)))
        a("v_lshl_or_b32 %s, %s, 16, %s" % (vr(T0 + 3), vr(T0 + 2), vr(T0 + 2)))
        a("v_cndmask_b32 %s, 0, %s, vcc" % (vr(MFR + 4 * i), vr(T0 + 3)))
        a("v_cndmask_b32 %s, 0, %s, vcc" % (vr(MFR + 4 * i + 1), vr(T0 + 2)))
        a("v_mov_b32 %s, 0" % vr(MFR + 4 * i + 2))
        a("v_mov_b32 %s, 0" % vr(MFR + 4 * i + 3))
    for t in range(NT):
        split3(a, CSR + t, WF + 4 * t, T0 + 3 * (t % 3), T0 + 1 + 3 * (t % 3), T0 + 2 + 3 * (t % 3))
    for t in range(NT):
        for i in range(NI):
            if T == "KV" and t >= 5:
                mfma(a, acc(t, i), MFR + 4 * i, WF + 4 * t, acc(t, i))
            else:
                mfma(a, acc(t, i), WF + 4 * t, MFR + 4 * i, acc(t, i))
    stamp(a, 5)
    R = dict(NI=NI, NT=NT, acc=acc, L=L, wnmask=wnmask)
    {"GU": epi_gu, "Q": epi_q, "KV": epi_kv}[T](a, R)
    if T == "GU":
        repack_job(a)
    a("s_waitcnt vmcnt(0)")
    dump_stamps(a, 7, 0x1200000)
    a("s_endpgm")


def pk(op, d, x, y, z=None, bc=None):
    s = "v_pk_%s_f32 %s, %s, %s" % (op, vr(d, 2), x, y)
    if z is not None:
        s += ", " + z
    if bc:
        s += " op_sel_hi:[%s]" % ",".join(str(b) for b in bc)
    return s


def epi_gu(a, R):
    acc = R["acc"]
    make_srd(a, 40, 24, HF_BYTES, WS_HF)
    A0, A1 = 160, 161
    a("v_lshrrev_b32 %s, 2, %s" % (vr(T0), vr(VW)))
    a("v_mul_u32_u24 %s, 192, %s" % (vr(T0), vr(T0)))
    a("v_bfe_u32 %s, %s, 1, 1" % (vr(T0 + 1), vr(VW)))
    a("v_mul_u32_u24 %s, 3, %s" % (vr(T0 + 1), vr(T0 + 1)))
    a("s_mul_i32 s48, s51, 384")
    a("s_mul_i32 s49, s52, 6")
    a("s_add_u32 s48, s48, s49")
    a("v_add3_u32 %s, %s, %s, s48" % (vr(T0), vr(T0), vr(T0 + 1)))
    a("v_lshlrev_b32 %s, 10, %s" % (vr(T0), vr(T0)))
    a("v_lshl_add_u32 %s, %s, 4, %s" % (vr(T0), vr(VL), vr(T0)))
    a("v_and_b32 %s, 1, %s" % (vr(T0 + 1), vr(VW)))
    a("v_lshl_add_u32 %s, %s, 10, %s" % (vr(A0), vr(T0 + 1), vr(T0)))
    a("v_lshl_add_u32 %s, %s, 3, %s" % (vr(A1), vr(T0 + 1), vr(T0)))
    c0 = 2.0 * 0.7978845608028654 * LOG2E
    c1 = c0 * 0.044715
    a("v_mov_b32 v162, 0x%x" % f2u(-c1))
    a("v_mov_b32 v164, 0x%x" % f2u(-c0))
    a("s_mov_b32 s49, 0")
    for i in range(4):
        O = 168 + 8 * (i & 1)
        rs = vr(RS + 2 * i, 2)
        tt = [T0 + 4 * j for j in range(3)]
        for j in range(3):
            G, U = acc(j, i), acc(3 + j, i)
            for p in range(2):
                a(pk("mul", G + 2 * p, vr(G + 2 * p, 2), rs, bc=[1, 0]))
                a(pk("mul", U + 2 * p, vr(U + 2 * p, 2), rs, bc=[1, 0]))
        for j in range(3):
            G, t = acc(j, i), tt[j]
            for p in range(2):
                a(pk("mul", t + 2 * p, vr(G + 2 * p, 2), vr(G + 2 * p, 2)))
        for j in range(3):
            t = tt[j]
            for p in range(2):
                a(pk("fma", t + 2 * p, vr(t + 2 * p, 2), "v[162:163]", "v[164:165]", bc=[1, 0, 0]))
        for j in range(3):
            G, t = acc(j, i), tt[j]
            for p in range(2):
                a(pk("mul", t + 2 * p, vr(t + 2 * p, 2), vr(G + 2 * p, 2)))
        for j in range(3):
            for r in range(4):
                a("v_exp_f32 %s, %s" % (vr(tt[j] + r), vr(tt[j] + r)))
        for j in range(3):
            G, U = acc(j, i), acc(3 + j, i)
            for p in range(2):
                a(pk("mul", G + 2 * p, vr(G + 2 * p, 2), vr(U + 2 * p, 2)))
        for j in range(3):
            t = tt[j]
            for p in range(2):
                a(pk("add", t + 2 * p, vr(t + 2 * p, 2), "1.0", bc=[1, 0]))
        for j in range(3):
            for r in range(4):
                a("v_rcp_f32 %s, %s" % (vr(tt[j] + r), vr(tt[j] + r)))
        for j in range(3):
            G, t = acc(j, i), tt[j]
            for p in range(2):
                a(pk("mul", G + 2 * p, vr(G + 2 * p, 2), vr(t + 2 * p, 2)))
        for j in range(3):
            G = acc(j, i)
            a("v_cvt_pk_bf16_f32 %s, %s, %s" % (vr(O + 2 * j), vr(G), vr(G + 1)))
            a("v_cvt_pk_bf16_f32 %s, %s, %s" % (vr(O + 2 * j + 1), vr(G + 2), vr(G + 3)))
        a("buffer_store_dwordx4 %s, %s, s[40:43], s49 offen" % (vr(O, 4), vr(A0)))
        a("buffer_store_dwordx2 %s, %s, s[40:43], s49 offen offset:2048" % (vr(O + 4, 2), vr(A1)))
        if i < 3:
            a("s_add_u32 s49, s49, %d" % (48 * 1024))


def wphi_frags(a, R, AF, AD):
    wnmask = R["wnmask"]
    a("v_and_b32 %s, 3, %s" % (vr(T0), vr(VL)))
    a("v_bfe_u32 %s, %s, 2, 2" % (vr(T0 + 1), vr(VL)))
    a("v_lshrrev_b32 %s, 4, %s" % (vr(T0 + 2), vr(VL)))
    a("v_and_b32 %s, %d, %s" % (vr(T0 + 3), wnmask, vr(VW)))
    a("v_lshl_add_u32 %s, %s, 2, %s" % (vr(T0 + 3), vr(T0 + 3), vr(T0)))
    a("v_mul_u32_u24 %s, 800, %s" % (vr(T0 + 3), vr(T0 + 3)))
    a("v_add_u32 %s, %d, %s" % (vr(T0 + 3), LDS_WPHI, vr(T0 + 3)))
    a("v_mul_u32_u24 %s, 20, %s" % (vr(T0 + 4), vr(T0)))
    a("v_lshlrev_b32 %s, 2, %s" % (vr(T0 + 5), vr(T0 + 2)))
    a("v_sub_u32 %s, %s, %s" % (vr(T0 + 5), vr(T0 + 5), vr(T0 + 4)))
    a("v_mov_b32 %s, %d" % (vr(T0 + 8), LDS_ZERO))
    combos = [(0, 0), (0, 1), (1, 0), (1, 1), (2, 0)]
    for n, (c, hh) in enumerate(combos):
        a("v_add_u32 %s, %d, %s" % (vr(T0 + 6), 32 * c + 16 * hh, vr(T0 + 5)))
        a("v_cmp_gt_u32 vcc, 20, %s" % vr(T0 + 6))
        a("v_add_u32 %s, %s, %s" % (vr(T0 + 6), vr(T0 + 6), vr(T0 + 1)))
        a("v_mul_u32_u24 %s, 40, %s" % (vr(T0 + 6), vr(T0 + 6)))
        a("v_add_u32 %s, %s, %s" % (vr(T0 + 6), vr(T0 + 6), vr(T0 + 3)))
        a("v_cndmask_b32 %s, %s, %s, vcc" % (vr(AD + n), vr(T0 + 8), vr(T0 + 6)))
    for tp in range(5):
        for n, (c, hh) in enumerate(combos):
            a("ds_read_b64_tr_b16 %s, %s offset:%d" % (vr(AF + (tp * 3 + c) * 4 + 2 * hh, 2), vr(AD + n), tp * 8))
        a("v_mov_b32 %s, 0" % vr(AF + (tp * 3 + 2) * 4 + 2))
        a("v_mov_b32 %s, 0" % vr(AF + (tp * 3 + 2) * 4 + 3))


def phi_tile(a, R, i, AF, BQ, P, E, TT):
    acc = R["acc"]
    rs = vr(RS + 2 * i, 2)
    p = lambda r: P[r >> 2] + (r & 3)
    e = lambda r: E[r >> 2] + (r & 3)
    for t in range(5):
        A = acc(t, i)
        for q in range(2):
            a(pk("mul", A + 2 * q, vr(A + 2 * q, 2), rs, bc=[1, 0]))
        bq = BQ[t >> 1] + 2 * (t & 1)
        a("v_cvt_pk_bf16_f32 %s, %s, %s" % (vr(bq), vr(A), vr(A + 1)))
        a("v_cvt_pk_bf16_f32 %s, %s, %s" % (vr(bq + 1), vr(A + 2), vr(A + 3)))
    a("v_mov_b32 %s, 0" % vr(BQ[2] + 2))
    a("v_mov_b32 %s, 0" % vr(BQ[2] + 3))
    for c in range(3):
        for tp in range(5):
            mfma(a, P[tp], AF + (tp * 3 + c) * 4, BQ[c], None if c == 0 else P[tp])
    mx, mn = TT, TT + 2
    a("v_max3_f32 %s, %s, %s, %s" % (vr(mx), vr(p(0)), vr(p(1)), vr(p(2))))
    a("v_min3_f32 %s, %s, %s, %s" % (vr(mn), vr(p(0)), vr(p(1)), vr(p(2))))
    for r in range(3, 19, 2):
        a("v_max3_f32 %s, %s, %s, %s" % (vr(mx), vr(mx), vr(p(r)), vr(p(r + 1))))
        a("v_min3_f32 %s, %s, %s, %s" % (vr(mn), vr(mn), vr(p(r)), vr(p(r + 1))))
    a("v_max_f32 %s, %s, %s" % (vr(mx), vr(mx), vr(p(19))))
    a("v_min_f32 %s, %s, %s" % (vr(mn), vr(mn), vr(p(19))))
    a("v_mov_b32 %s, 0x%x" % (vr(TT + 4), f2u(LOG2E)))
    a("v_mul_f32 %s, %s, %s" % (vr(mx), vr(mx), vr(TT + 4)))
    a("v_mul_f32 %s, %s, %s" % (vr(mn), vr(mn), vr(TT + 4)))
    for r in range(0, 20, 2):
        a(pk("fma", e(r), vr(p(r), 2), vr(TT + 4, 2), vr(mx, 2), bc=[1, 0, 0]) + " neg_lo:[0,0,1] neg_hi:[0,0,1]")
        a(pk("fma", p(r), vr(p(r), 2), vr(TT + 4, 2), vr(mn, 2), bc=[1, 0, 0]) + " neg_lo:[1,0,0] neg_hi:[1,0,0]")
    for r in range(20):
        a("v_exp_f32 %s, %s" % (vr(e(r)), vr(e(r))))
        a("v_exp_f32 %s, %s" % (vr(p(r)), vr(p(r))))
    s1, s2 = TT + 6, TT + 8
    a(pk("add", s1, vr(e(0), 2), vr(e(2), 2)))
    a(pk("add", s2, vr(p(0), 2), vr(p(2), 2)))
    for r in range(4, 20, 2):
        a(pk("add", s1, vr(s1, 2), vr(e(r), 2)))
        a(pk("add", s2, vr(s2, 2), vr(p(r), 2)))
    a("v_add_f32 %s, %s, %s" % (vr(s1), vr(s1), vr(s1 + 1)))
    a("v_add_f32 %s, %s, %s" % (vr(s2), vr(s2), vr(s2 + 1)))
    a("v_rcp_f32 %s, %s" % (vr(s1), vr(s1)))
    a("v_rcp_f32 %s, %s" % (vr(s2), vr(s2)))
    for r in range(0, 20, 2):
        a(pk("mul", e(r), vr(e(r), 2), vr(s1, 2), bc=[1, 0]))
        a(pk("mul", p(r), vr(p(r), 2), vr(s2, 2), bc=[1, 0]))
    for r in range(10):
        a("v_cvt_pk_bf16_f32 %s, %s, %s" % (vr(e(r)), vr(e(2 * r)), vr(e(2 * r + 1))))
    for r in range(10):
        a("v_cvt_pk_bf16_f32 %s, %s, %s" % (vr(e(10 + r)), vr(p(2 * r)), vr(p(2 * r + 1))))


def phi_pair(a, R, i0, AF):
    acc = R["acc"]
    PA = [164 + 4 * k for k in range(5)]
    EA = [184 + 4 * k for k in range(5)]
    PB = [acc(t, i0) for t in range(5)]
    EB = [acc(t, i0 + 1) for t in range(5)]
    ra, rb = Rec(), Rec()
    phi_tile(ra, R, i0, AF, [80, 84, 88], PA, EA, T0)
    phi_tile(rb, R, i0 + 1, AF, [92, 156, 238], PB, EB, T0 + 10)
    head = 22
    for x, y in zip(ra.l[:head], rb.l[:head]):
        a(x)
        a(y)
    ra.l, rb.l = ra.l[head:], rb.l[head:]
    merge(a, ra, rb)
    return EA, EB


def epi_q(a, R):
    a.comment("Q epilogue")
    AF = 96
    AD = 156
    BQ = 164
    BQ = 80
    P, E = 164, 184
    make_srd(a, 40, 24, PQF_BYTES, WS_PQF)
    wphi_frags(a, R, AF, AD)
    A0 = 161
    a("v_and_b32 %s, 3, %s" % (vr(T0), vr(VW)))
    a("v_lshlrev_b32 %s, 4, %s" % (vr(T0), vr(T0)))
    a("s_lshl_b32 s48, s51, 6")
    a("s_add_u32 s48, s48, s52")
    a("v_add_u32 %s, s48, %s" % (vr(T0), vr(T0)))
    a("v_mul_u32_u24 %s, 5120, %s" % (vr(T0), vr(T0)))
    a("v_lshl_add_u32 %s, %s, 4, %s" % (vr(A0), vr(VL), vr(T0)))
    a("s_mov_b32 s49, %d" % (8 * 5120))
    a("s_movk_i32 s50, 4096")
    for i0 in (0,):
        for qq in phi_pair(a, R, i0, AF):
            for c in range(5):
                if c < 4:
                    a("buffer_store_dwordx4 %s, %s, s[40:43], 0 offen offset:%d" % (vr(qq[c], 4), vr(A0), 1024 * c))
                else:
                    a("buffer_store_dwordx4 %s, %s, s[40:43], s50 offen" % (vr(qq[c], 4), vr(A0)))
            a("v_add_u32 %s, s49, %s" % (vr(A0), vr(A0)))


def epi_kv(a, R):
    acc = R["acc"]
    L = R["L"]
    AF = 96
    AD = 156
    ONE, RSF, RR = 164, 168, 176
    r1 = Rec()
    t1 = T0 + 10
    r1("v_cmp_gt_u32 vcc, 16, %s" % vr(VL))
    r1("v_mov_b32 %s, 0x3f803f80" % vr(t1))
    r1("v_mov_b32 %s, 0x3f80" % vr(t1 + 1))
    r1("v_cndmask_b32 %s, 0, %s, vcc" % (vr(ONE), vr(t1)))
    r1("v_cndmask_b32 %s, 0, %s, vcc" % (vr(ONE + 1), vr(t1 + 1)))
    r1("v_mov_b32 %s, 0" % vr(ONE + 2))
    r1("v_mov_b32 %s, 0" % vr(ONE + 3))
    for i in range(2):
        r1("v_mov_b32 %s, %s" % (vr(t1 + 4), vr(RS + 2 * i)))
        split3(r1, t1 + 4, RSF + 4 * i, t1, t1 + 1, t1 + 2)
    for x in r1.l:
        a(x)
    for i in range(2):
        mfma(a, RR + 4 * i, RSF + 4 * i, ONE, None)
    wphi_frags(a, R, AF, AD)
    for i in range(2):
        for j in range(5):
            A = acc(5 + j, i)
            for p in range(2):
                a(pk("mul", A + 2 * p, vr(A + 2 * p, 2), vr(RR + 4 * i + 2 * p, 2)))
    for j in range(5):
        A0_, A1_ = acc(5 + j, 0), acc(5 + j, 1)
        a("v_cvt_pk_bf16_f32 %s, %s, %s" % (vr(A0_), vr(A0_), vr(A0_ + 1)))
        a("v_cvt_pk_bf16_f32 %s, %s, %s" % (vr(A0_ + 1), vr(A0_ + 2), vr(A0_ + 3)))
        a("v_cvt_pk_bf16_f32 %s, %s, %s" % (vr(A0_ + 2), vr(A1_), vr(A1_ + 1)))
        a("v_cvt_pk_bf16_f32 %s, %s, %s" % (vr(A0_ + 3), vr(A1_ + 2), vr(A1_ + 3)))
    q0, q1 = phi_pair(a, R, 0, AF)
    SEL = 144
    ONES = 152
    a("v_and_b32 %s, 15, %s" % (vr(T0), vr(VL)))
    a("v_lshrrev_b32 %s, 4, %s" % (vr(T0 + 1), vr(VL)))
    a("v_lshrrev_b32 %s, 3, %s" % (vr(T0 + 2), vr(T0)))
    a("v_and_b32 %s, 7, %s" % (vr(T0 + 3), vr(T0)))
    a("v_and_b32 %s, 1, %s" % (vr(T0 + 4), vr(T0 + 3)))
    a("v_lshlrev_b32 %s, 4, %s" % (vr(T0 + 4), vr(T0 + 4)))
    a("v_mov_b32 %s, 0x3f80" % vr(T0 + 5))
    a("v_lshlrev_b32 %s, %s, %s" % (vr(T0 + 5), vr(T0 + 4), vr(T0 + 5)))
    a("v_lshrrev_b32 %s, 1, %s" % (vr(T0 + 3), vr(T0 + 3)))
    for aa in range(2):
        a("v_add_u32 %s, %d, %s" % (vr(T0 + 6), 2 * aa, vr(T0 + 2)))
        a("v_cmp_eq_u32 s[54:55], %s, %s" % (vr(T0 + 6), vr(T0 + 1)))
        a("v_cndmask_b32 %s, 0, %s, s[54:55]" % (vr(T0 + 7), vr(T0 + 5)))
        for r in range(4):
            a("v_cmp_eq_u32 vcc, %d, %s" % (r, vr(T0 + 3)))
            a("v_cndmask_b32 %s, 0, %s, vcc" % (vr(SEL + 4 * aa + r), vr(T0 + 7)))
    for r in range(4):
        a("v_mov_b32 %s, 0x3f803f80" % vr(ONES + r))
    A2 = 104
    D = 156
    combos = [(c, aa) for c in range(5) for aa in range(2)]
    WA = AF
    r2 = Rec()
    r2("v_mul_u32_u24 %s, 13440, %s" % (vr(T0 + 8), vr(VW)))
    r2("v_and_b32 %s, 1, %s" % (vr(T0 + 9), vr(T0 + 1)))
    r2("v_lshl_add_u32 %s, %s, 4, %s" % (vr(T0 + 8), vr(T0 + 9), vr(T0 + 8)))
    r2("v_lshrrev_b32 %s, 1, %s" % (vr(T0 + 9), vr(T0 + 1)))
    r2("v_mov_b32 %s, %d" % (vr(T0 + 10), LDS_DUMMY))
    pairs = []
    n = 0
    for aa in range(2):
        r2("v_add_u32 %s, %d, %s" % (vr(T0 + 11), 2 * aa, vr(T0 + 9)))
        r2("v_mul_u32_u24 %s, 3360, %s" % (vr(T0 + 12), vr(T0 + 11)))
        r2("v_add_u32 %s, %s, %s" % (vr(T0 + 12), vr(T0 + 12), vr(T0 + 8)))
        r2("v_mul_u32_u24 %s, 20, %s" % (vr(T0 + 13), vr(T0 + 11)))
        for Tt in ((0, 1, 2) if aa == 0 else (2, 3, 4)):
            r2("v_add_u32 %s, %d, %s" % (vr(T0 + 14), 16 * Tt, vr(T0)))
            r2("v_sub_u32 %s, %s, %s" % (vr(T0 + 14), vr(T0 + 14), vr(T0 + 13)))
            r2("v_cmp_gt_u32 vcc, 20, %s" % vr(T0 + 14))
            r2("v_mul_u32_u24 %s, 160, %s" % (vr(T0 + 14), vr(T0 + 14)))
            r2("v_add_u32 %s, %s, %s" % (vr(T0 + 14), vr(T0 + 14), vr(T0 + 12)))
            r2("v_cndmask_b32 %s, %s, %s, vcc" % (vr(WA + n), vr(T0 + 10), vr(T0 + 14)))
            pairs.append((aa, Tt, WA + n))
            n += 1
        r2("v_cmp_eq_u32 vcc, 0, %s" % vr(T0))
        r2("v_add_u32 %s, 3200, %s" % (vr(T0 + 14), vr(T0 + 12)))
        r2("v_cndmask_b32 %s, %s, %s, vcc" % (vr(WA + 6 + aa), vr(T0 + 10), vr(T0 + 14)))
    r3 = Rec()
    for n_ in range(12):
        if n_ < 10:
            c, aa = combos[n_]
            d = D + 8 * (n_ % 3)
            mfma(r3, d, q0[c], SEL + 4 * aa, None)
            mfma(r3, d + 4, q1[c], SEL + 4 * aa, None)
        if n_ >= 2:
            m_ = n_ - 2
            d = D + 8 * (m_ % 3)
            x = A2 + 4 * m_
            for r in range(4):
                r3("v_cvt_pk_bf16_f32 %s, %s, %s" % (vr(x + r), vr(d + 2 * r), vr(d + 2 * r + 1)))
    merge(a, r3, r2)
    a("s_waitcnt lgkmcnt(0)")
    a("s_barrier")
    stamp(a, 3)
    OUTS = [156, 230]
    for n_ in range(11):
        if n_ < 10:
            c, aa = combos[n_]
            o = OUTS[n_ & 1]
            x = A2 + 4 * n_
            ps = [p for p in pairs if p[0] == aa]
            for q, (_, Tt, ad) in enumerate(ps):
                mfma(a, o + 4 * q, x, acc(5 + Tt, 0), None)
            mfma(a, o + 12, x, ONES, None)
        if n_ >= 1:
            (c1, a1) = combos[n_ - 1]
            o1 = OUTS[(n_ - 1) & 1]
            ps1 = [p for p in pairs if p[0] == a1]
            for q, (_, Tt, ad) in enumerate(ps1):
                a("ds_write_b128 %s, %s offset:%d" % (vr(ad), vr(o1 + 4 * q, 4), 32 * c1))
            a("ds_write_b128 %s, %s offset:%d" % (vr(WA + 6 + a1), vr(o1 + 12, 4), 32 * c1))
    a("s_waitcnt lgkmcnt(0)")
    a("s_barrier")
    stamp(a, 4)
    make_srd(a, 40, 24, KVA_BYTES, WS_KVA)
    a("s_mul_i32 s48, s52, %d" % (4 * 3360))
    a("v_lshlrev_b32 %s, 2, %s" % (vr(T0), vr(VTID)))
    for q in range(14):
        b = 32 + 4 * q
        for wm in range(4):
            a("ds_read_b32 %s, %s offset:%d" % (vr(b + wm), vr(T0), wm * 13440 + q * 1024))
    a("v_mov_b32 %s, 0x7fffff00" % vr(T0 + 3))
    a("v_cmp_gt_u32 vcc, %d, %s" % (3360 - 13 * 256, vr(VTID)))
    a("v_cndmask_b32 %s, %s, %s, vcc" % (vr(T0 + 2), vr(T0 + 3), vr(T0)))
    for q in range(14):
        b = 32 + 4 * q
        a("v_add_f32 %s, %s, %s" % (vr(b), vr(b), vr(b + 1)))
        a("v_add_f32 %s, %s, %s" % (vr(b + 2), vr(b + 2), vr(b + 3)))
        a("v_add_f32 %s, %s, %s" % (vr(b), vr(b), vr(b + 2)))
        a("buffer_atomic_add_f32 %s, %s, s[40:43], s48 offen offset:%d sc1" % (vr(b), vr(T0 + 2 if q == 13 else T0), (q & 3) * 1024))
        if (q & 3) == 3:
            a("s_add_u32 s48, s48, 4096")


def repack_job(a):
    a.comment("==== repack job")
    a("s_cmp_ge_u32 s47, 2")
    a("s_cbranch_scc1 Lrj_done")
    a("s_lshl_b32 s48, s47, 7")
    a("s_add_u32 s51, s2, s48")
    a("s_cmp_ge_u32 s51, 192")
    a("s_cbranch_scc1 Lrj_done")
    a("s_and_b32 s52, s51, 7")
    a("s_lshr_b32 s51, s51, 3")
    a("s_lshl_b32 s46, s47, 14")
    make_srd(a, 32, 24, W2F_BYTES, WS_W2F)
    make_srd(a, 28, 18, 1536 * 1280)
    a("s_mul_i32 s53, s51, %d" % (96 * 1280))
    a("s_mul_i32 s54, s51, %d" % (3 * 5120))
    a("s_cmp_lt_u32 s51, 16")
    a("s_cbranch_scc1 Lrj_h")
    make_srd(a, 28, 10, 640 * 1280)
    a("s_sub_u32 s49, s51, 16")
    a("s_mul_i32 s53, s49, %d" % (80 * 1280))
    a.label("Lrj_h")
    a.hist = []
    a("s_mul_i32 s48, s52, 160")
    a("s_add_u32 s53, s53, s48")
    a("s_mov_b32 s49, 0x1999999a")
    for q in range(15):
        a("v_add_u32 v1, %d, %s" % (64 * q, vr(VL)))
        a("v_mul_hi_u32 v2, v1, s49")
        a("v_mul_u32_u24 v3, 10, v2")
        a("v_sub_u32 v3, v1, v3")
        a("v_mul_u32_u24 v2, 1280, v2")
        a("v_lshl_add_u32 v2, v3, 4, v2")
        a("s_add_u32 m0, s46, %d" % (q * 1024))
        a("buffer_load_dwordx4 v2, s[28:31], s53 offen lds")
    a("v_and_b32 v3, 15, %s" % vr(VL))
    a("v_lshrrev_b32 v4, 4, %s" % vr(VL))
    a("v_and_b32 v6, 3, v3")
    a("v_lshlrev_b32 v6, 3, v6")
    a("v_add_u32 v6, s46, v6")
    a("v_lshrrev_b32 v7, 2, v3")
    a("s_mul_i32 s48, s52, %d" % (72 * 5120))
    a("s_add_u32 s48, s48, s54")
    a("v_lshlrev_b32 v8, 4, %s" % vr(VL))
    a("s_cmp_lt_u32 s51, 16")
    a("s_cbranch_scc0 Lrj_o")
    a("v_lshl_add_u32 v9, v4, 2, v7")
    a("v_mul_u32_u24 v9, 160, v9")
    a("v_add_u32 v9, v9, v6")
    a("s_waitcnt vmcnt(0)")
    tiles = [(0, 16), (48, 64), (32, 80)]
    for cc in range(3):
        for t in range(5):
            d = 16 + 4 * (cc * 5 + t)
            for hh in range(2):
                a("ds_read_b64_tr_b16 %s, v9 offset:%d" % (vr(d + 2 * hh, 2), t * 32 + tiles[cc][hh] * 160))
    a("s_branch Lrj_st")
    a.label("Lrj_o")
    a.hist = []
    a.lg = []
    a("v_mul_u32_u24 v9, 20, v4")
    a("v_add_u32 v9, v9, v7")
    a("v_mul_u32_u24 v9, 160, v9")
    a("v_add_u32 v9, v9, v6")
    a("s_waitcnt vmcnt(0)")
    for c in range(3):
        for t in range(5):
            d = 16 + 4 * (c * 5 + t)
            a("ds_read_b64_tr_b16 %s, v9 offset:%d" % (vr(d, 2), t * 32 + 8 * c * 160))
            if c < 2:
                a("ds_read_b64_tr_b16 %s, v9 offset:%d" % (vr(d + 2, 2), t * 32 + (8 * c + 4) * 160))
            else:
                a("v_mov_b32 %s, 0" % vr(d + 2))
                a("v_mov_b32 %s, 0" % vr(d + 3))
    a.label("Lrj_st")
    a.hist = []
    a("s_waitcnt lgkmcnt(0)")
    a.lg = []
    for n in range(15):
        d = 16 + 4 * n
        a("buffer_store_dwordx4 %s, v8, s[32:35], s48 offen offset:%d" % (vr(d, 4), (n & 3) * 1024))
        if (n & 3) == 3:
            a("s_add_u32 s48, s48, 4096")
    a.label("Lrj_done")
    a.hist = []


def repack(a):
    a.comment("==== repack")
    a("v_and_b32 v1, 63, v0")
    a("v_lshrrev_b32 v2, 6, v0")
    a("v_readfirstlane_b32 s47, v2")
    a("s_sub_u32 s51, s2, 224")
    make_srd(a, 32, 24, W2F_BYTES, WS_W2F)
    a("v_and_b32 v3, 15, v1")
    a("v_lshrrev_b32 v4, 4, v1")
    a("v_lshlrev_b32 v5, 4, v0")
    a("s_lshl_b32 s46, s47, 10")
    a("v_mul_u32_u24 v6, 160, v2")
    a("v_and_b32 v7, 3, v3")
    a("v_lshl_add_u32 v6, v7, 3, v6")
    a("v_lshrrev_b32 v7, 2, v3")
    a("v_mul_u32_u24 v8, %d, v2" % (72 * 5120))
    a("v_lshl_add_u32 v8, v1, 4, v8")
    a("s_cmp_ge_u32 s51, 24")
    a("s_cbranch_scc1 Lrp_o")
    a("s_cmp_ge_u32 s51, 16")
    a("s_cbranch_scc1 Lk1_exit")
    make_srd(a, 28, 18, 1536 * 1280)
    a("s_mul_i32 s48, s51, %d" % (96 * 1280))
    for q in range(15):
        a("s_add_u32 m0, s46, %d" % (q * 8192))
        a("buffer_load_dwordx4 v5, s[28:31], s48 offen lds")
        a("s_add_u32 s48, s48, 8192")
    a("v_lshl_add_u32 v9, v4, 2, v7")
    a("v_mul_u32_u24 v9, 1280, v9")
    a("v_add_u32 v9, v9, v6")
    a("v_add_u32 v10, %d, v9" % (48 * 1280))
    a("s_waitcnt vmcnt(0)")
    a("s_barrier")
    a("s_mul_i32 s48, s51, %d" % (3 * 5120))
    tiles = [(0, 16), (48, 64), (32, 80)]
    for cc in range(3):
        for t in range(5):
            d = 16 + 4 * (cc * 5 + t)
            for hh in range(2):
                row = tiles[cc][hh]
                a("ds_read_b64_tr_b16 %s, %s offset:%d" % (vr(d + 2 * hh, 2), "v10" if row >= 48 else "v9", t * 32 + (row % 48) * 1280))
    for n in range(15):
        d = 16 + 4 * n
        a("buffer_store_dwordx4 %s, v8, s[32:35], s48 offen offset:%d" % (vr(d, 4), (n & 3) * 1024))
        if (n & 3) == 3:
            a("s_add_u32 s48, s48, 4096")
    a("s_endpgm")
    a.label("Lrp_o")
    a.hist = []
    make_srd(a, 28, 10, 640 * 1280)
    a("s_sub_u32 s51, s51, 24")
    a("s_mul_i32 s48, s51, %d" % (80 * 1280))
    for q in range(13):
        a("s_add_u32 m0, s46, %d" % (q * 8192))
        a("buffer_load_dwordx4 v5, s[28:31], s48 offen lds")
        a("s_add_u32 s48, s48, 8192")
    a("v_mul_u32_u24 v9, 20, v4")
    a("v_add_u32 v9, v9, v7")
    a("v_mul_u32_u24 v9, 1280, v9")
    a("v_add_u32 v9, v9, v6")
    a("s_waitcnt vmcnt(0)")
    a("s_barrier")
    for c in range(3):
        for t in range(5):
            d = 16 + 4 * (c * 5 + t)
            a("ds_read_b64_tr_b16 %s, v9 offset:%d" % (vr(d, 2), t * 32 + 8 * c * 1280))
            if c < 2:
                a("ds_read_b64_tr_b16 %s, v9 offset:%d" % (vr(d + 2, 2), t * 32 + (8 * c + 4) * 1280))
            else:
                a("v_mov_b32 %s, 0" % vr(d + 2))
                a("v_mov_b32 %s, 0" % vr(d + 3))
    a("s_mul_i32 s48, s51, %d" % (3 * 5120))
    a("s_add_u32 s48, s48, %d" % (48 * 5120))
    for n in range(15):
        d = 16 + 4 * n
        a("buffer_store_dwordx4 %s, v8, s[32:35], s48 offen offset:%d" % (vr(d, 4), (n & 3) * 1024))
        if (n & 3) == 3:
            a("s_add_u32 s48, s48, 4096")
    a("s_endpgm")


def gen_k1(a):
    a.label("k1_kernel")
    load_kernargs(a)
    a("s_cmp_ge_u32 s2, 256")
    a("s_cbranch_scc1 Lk1_exit")
    a("s_waitcnt lgkmcnt(0)")
    a("s_cmp_ge_u32 s2, 128")
    a("s_cbranch_scc1 Lk1_qkv")
    a("s_lshr_b32 s51, s2, 3")
    a("s_and_b32 s52, s2, 7")
    k1_path(a, "GU")
    a.label("Lk1_qkv")
    a.hist = []
    a("s_sub_u32 s48, s2, 128")
    a("s_lshr_b32 s51, s48, 3")
    a("s_and_b32 s52, s48, 7")
    a("v_readfirstlane_b32 s47, v0")
    a("s_cmp_ge_u32 s47, 256")
    a("s_cbranch_scc1 Lk1_q")
    k1_path(a, "KV")
    a.label("Lk1_q")
    a.hist = []
    k1_path(a, "Q")
    a.label("Lk1_exit")
    a("s_endpgm")


K2_LDS = 81920
ND = 4


def gen_k2(a):
    a.label("k2_kernel")
    load_kernargs(a)
    a("s_cmp_ge_u32 s2, 256")
    a("s_cbranch_scc1 Lk2_exit")
    a("s_waitcnt lgkmcnt(0)")
    a("s_and_b32 s51, s2, 31")
    a("s_lshr_b32 s52, s2, 5")
    make_srd(a, 28, 24, HF_BYTES, WS_HF)
    make_srd(a, 32, 24, OF_BYTES, WS_OF)
    make_srd(a, 36, 24, W2F_BYTES, WS_W2F)
    make_srd(a, 40, 24, PQF_BYTES, WS_PQF)
    make_srd(a, 56, 24, KVA_BYTES, WS_KVA)
    make_srd(a, 60, 24, 4096, WS_FLG)
    ACC2 = 0
    FR = 80
    VA, VO, VWt = 224, 225, 226
    L2, W2, TID = 227, 228, 229
    T = 230
    a("v_mov_b32 %s, v0" % vr(TID))
    a("v_and_b32 %s, 63, v0" % vr(L2))
    a("v_lshrrev_b32 %s, 6, v0" % vr(W2))
    a("v_readfirstlane_b32 s47, %s" % vr(W2))
    stamp(a, 0)
    a("s_mul_i32 s48, s51, %d" % (4 * 48 * 1024))
    if "sameA" in FL:
        a("s_mov_b32 s48, 0")
    a("v_lshlrev_b32 %s, 4, %s" % (vr(T), vr(L2)))
    a("v_lshl_add_u32 %s, %s, 10, %s" % (vr(T + 1), vr(W2), vr(T)))
    a("v_add_u32 %s, s48, %s" % (vr(VA), vr(T + 1)))
    a("s_mul_i32 s48, s51, %d" % (4 * 24 * 1024))
    a("v_add_u32 %s, s48, %s" % (vr(VO), vr(T + 1)))
    a("s_mul_i32 s48, s52, %d" % (72 * 5120))
    if "sameW" in FL:
        a("s_mov_b32 s48, 0")
    a("v_mul_u32_u24 %s, 5120, %s" % (vr(T + 2), vr(W2)))
    a("v_add3_u32 %s, %s, %s, s48" % (vr(VWt), vr(T + 2), vr(T)))

    NSTEP = 18

    a("s_mul_i32 s53, s51, 0x5556")
    a("s_lshr_b32 s53, s53, 18")
    a("s_mul_i32 s53, s53, 12")
    a("s_sub_u32 s53, s51, s53")
    if "norot" in FL:
        a("s_mov_b32 s53, 0")

    def loads(s):
        b = FR + (s % ND) * 36
        if s == 12:
            a("s_lshr_b32 s53, s53, 1")
        a("s_mul_i32 s48, s53, 20480")
        if s >= 12:
            a("s_add_u32 s48, s48, %d" % (12 * 20480))
        a("s_add_u32 s49, s48, 4096")
        for t in range(5):
            a("buffer_load_dwordx4 %s, %s, s[36:39], s48 offen offset:%d" % (vr(b + 4 * t, 4), vr(VWt), t * 1024) if t < 4 else
              "buffer_load_dwordx4 %s, %s, s[36:39], s49 offen" % (vr(b + 4 * t, 4), vr(VWt)))
        a("s_lshl_b32 s48, s53, 12")
        for i in range(4):
            if s < 12:
                a("buffer_load_dwordx4 %s, %s, s[28:31], s48 offen" % (vr(b + 20 + 4 * i, 4), vr(VA)))
                a("s_add_u32 s48, s48, %d" % (48 * 1024))
            else:
                a("buffer_load_dwordx4 %s, %s, s[32:35], s48 offen sc1" % (vr(b + 20 + 4 * i, 4), vr(VO)))
                a("s_add_u32 s48, s48, %d" % (24 * 1024))
        a("s_add_u32 s53, s53, 1")
        a("s_cmp_ge_u32 s53, %d" % (12 if s < 12 else 6))
        a("s_cselect_b32 s53, 0, s53")

    a.auto = True
    a("s_mul_i32 s48, s52, %d" % (4 * 3360))
    a("v_lshlrev_b32 %s, 4, %s" % (vr(T + 3), vr(TID)))
    a("v_add_u32 %s, s48, %s" % (vr(T + 4), vr(T + 3)))
    a("v_mov_b32 %s, 0x7fffff00" % vr(T + 5))
    a("v_cmp_gt_u32 vcc, %d, %s" % (840 - 768, vr(TID)))
    a("v_cndmask_b32 %s, %s, %s, vcc" % (vr(T + 5), vr(T + 5), vr(T + 4)))
    for q in range(3):
        a("buffer_load_dwordx4 %s, %s, s[56:59], 0 offen offset:%d" % (vr(4 * q, 4), vr(T + 4), 0) if q == 0 else
          "buffer_load_dwordx4 %s, %s, s[56:59], s49 offen" % (vr(4 * q, 4), vr(T + 4)))
        a("s_mov_b32 s49, %d" % (4096 * (q + 1)))
    a("buffer_load_dwordx4 v[12:15], %s, s[56:59], s49 offen" % vr(T + 5))
    a("s_lshl_b32 s48, s51, 5")
    a("s_add_u32 s48, s48, s52")
    a("s_mul_i32 s48, s48, 5120")
    a("v_mul_u32_u24 %s, %d, %s" % (vr(T + 6), 8 * 5120, vr(W2)))
    a("v_add3_u32 %s, %s, %s, s48" % (vr(T + 6), vr(T + 6), vr(T)))
    a("s_mov_b32 s49, 4096")
    for c in range(5):
        if c < 4:
            a("buffer_load_dwordx4 %s, %s, s[40:43], 0 offen offset:%d" % (vr(16 + 4 * c, 4), vr(T + 6), c * 1024))
        else:
            a("buffer_load_dwordx4 %s, %s, s[40:43], s49 offen" % (vr(16 + 4 * c, 4), vr(T + 6)))
    n_before = len(a.vm)
    for s in range(ND):
        loads(s)
    a("v_lshlrev_b32 %s, 3, %s" % (vr(T + 3), vr(TID)))
    for q in range(4):
        a("v_cvt_pk_bf16_f32 %s, %s, %s" % (vr(4 * q), vr(4 * q), vr(4 * q + 1)))
        a("v_cvt_pk_bf16_f32 %s, %s, %s" % (vr(4 * q + 1), vr(4 * q + 2), vr(4 * q + 3)))
        a("ds_write_b64 %s, %s offset:%d" % (vr(T + 3), vr(4 * q, 2), q * 2048))
    a("s_waitcnt lgkmcnt(0)")
    a("s_barrier")
    stamp(a, 1)
    a("v_bfe_u32 %s, %s, 2, 2" % (vr(T + 3), vr(L2)))
    a("v_and_b32 %s, 3, %s" % (vr(T + 4), vr(L2)))
    a("v_lshrrev_b32 %s, 4, %s" % (vr(T + 5), vr(L2)))
    a("v_mul_u32_u24 %s, 1680, %s" % (vr(T + 7), vr(T + 3)))
    a("v_mul_u32_u24 %s, 80, %s" % (vr(T + 4), vr(T + 4)))
    a("v_add_u32 %s, %s, %s" % (vr(T + 4), vr(T + 4), vr(T + 7)))
    a("v_add_u32 %s, 1600, %s" % (vr(T + 7), vr(T + 7)))
    a("v_cmp_eq_u32 vcc, %s, %s" % (vr(T + 3), vr(T + 5)))
    a("v_mov_b32 %s, 6720" % vr(T + 8))
    a("v_cndmask_b32 %s, %s, %s, vcc" % (vr(T + 7), vr(T + 8), vr(T + 7)))
    for tp in range(5):
        a("v_add_u32 %s, %d, %s" % (vr(T + 9), 320 * tp, vr(T + 4)))
        a("v_cndmask_b32 %s, %s, %s, vcc" % (vr(T + 10 + tp), vr(T + 8), vr(T + 9)))
    NUM = 36
    DEN = 56
    AFr = 60
    for tp in range(6):
        ad = T + 10 + tp if tp < 5 else T + 7
        dst = NUM + 4 * tp if tp < 5 else DEN
        for c in range(5):
            a("ds_read_b128 %s, %s offset:%d" % (vr(AFr + 4 * c, 4), vr(ad), c * 16))
        for c in range(5):
            mfma(a, dst, AFr + 4 * c, 16 + 4 * c, None if c == 0 else dst)
    a("v_cvt_pk_bf16_f32 %s, %s, %s" % (vr(T + 3), vr(DEN), vr(DEN)))
    a("v_lshlrev_b32 %s, 16, %s" % (vr(T + 3), vr(T + 3)))
    a("v_add_f32 %s, 0x%x, %s" % (vr(T + 3), f2u(1e-6), vr(T + 3)))
    a("v_cvt_pk_bf16_f32 %s, %s, %s" % (vr(T + 3), vr(T + 3), vr(T + 3)))
    a("v_lshlrev_b32 %s, 16, %s" % (vr(T + 3), vr(T + 3)))
    a("v_rcp_f32 %s, %s" % (vr(T + 4), vr(T + 3)))
    for r in range(0, 20, 2):
        rnd2(a, NUM + r, NUM + r + 1, T + 5)
    for r in range(0, 20, 2):
        a(pk("mul", NUM + r, vr(NUM + r, 2), vr(T + 4, 2), bc=[1, 0]))
    for r in range(10):
        a("v_cvt_pk_bf16_f32 %s, %s, %s" % (vr(60 + r), vr(NUM + 2 * r), vr(NUM + 2 * r + 1)))
    a("v_mov_b32 v70, 0")
    a("v_mov_b32 v71, 0")
    a("s_lshl_b32 s48, s51, 5")
    a("s_add_u32 s48, s48, s52")
    a("s_mul_i32 s48, s48, 3072")
    a("v_mul_u32_u24 %s, %d, %s" % (vr(T + 6), 8 * 3072, vr(W2)))
    a("v_add3_u32 %s, %s, %s, s48" % (vr(T + 6), vr(T + 6), vr(T)))
    for c in range(3):
        a("buffer_store_dwordx4 %s, %s, s[32:35], 0 offen offset:%d sc1" % (vr(60 + 4 * c, 4), vr(T + 6), c * 1024))
    a("s_waitcnt vmcnt(0)")
    a("v_mov_b32 %s, 1" % vr(T + 3))
    a("s_lshl_b32 s48, s51, 7")
    a("s_lshl_b32 s49, s52, 4")
    a("s_add_u32 s48, s48, s49")
    a("s_lshl_b32 s49, s47, 2")
    a("s_add_u32 s48, s48, s49")
    a("v_mov_b32 %s, s48" % vr(T + 4))
    a("s_mov_b64 exec, 1")
    a("buffer_store_dword %s, %s, s[60:63], 0 offen sc1" % (vr(T + 3), vr(T + 4)))
    a("s_mov_b64 exec, -1")
    for r in range(80):
        a("v_mov_b32 %s, 0" % vr(ACC2 + r))
    stamp(a, 2)
    a.auto = False
    a.vm = []
    issued = ND
    for s in range(NSTEP):
        b = FR + (s % ND) * 36
        rem = issued - 1 - s
        if s == 12:
            stamp(a, 3)
        if s >= ND:
            a("s_waitcnt vmcnt(%d)" % (9 * rem))
        for t in range(5):
            for i in range(4):
                ac = ACC2 + (t * 4 + i) * 4
                mfma(a, ac, b + 4 * t, b + 20 + 4 * i, ac)
        if issued < NSTEP:
            if issued == 8:
                a("s_lshl_b32 s48, s51, 7")
                a("v_and_b32 %s, 31, %s" % (vr(T + 3), vr(L2)))
                a("v_lshlrev_b32 %s, 2, %s" % (vr(T + 3), vr(T + 3)))
                a("v_add_u32 %s, s48, %s" % (vr(T + 3), vr(T + 3)))
                a("buffer_load_dword %s, %s, s[60:63], 0 offen sc1" % (vr(T + 4), vr(T + 3)))
            if issued == 12:
                a("v_cmp_ne_u32 vcc, 1, %s" % vr(T + 4))
                a("s_cmp_eq_u64 vcc, 0")
                a("s_cbranch_scc1 Lk2_wf_ok")
                a("s_mov_b32 s49, 0")
                a.label("Lk2_wf")
                a.hist = []
                a("s_add_u32 s49, s49, 1")
                a("s_cmp_ge_u32 s49, 0x40000")
                a("s_cbranch_scc1 Lk2_wf_ok")
                a("s_sleep 1")
                a("buffer_load_dword %s, %s, s[60:63], 0 offen sc1" % (vr(T + 4), vr(T + 3)))
                a("s_waitcnt vmcnt(0)")
                a("v_cmp_ne_u32 vcc, 1, %s" % vr(T + 4))
                a("s_cmp_eq_u64 vcc, 0")
                a("s_cbranch_scc0 Lk2_wf")
                a.label("Lk2_wf_ok")
                a.hist = []
            loads(issued)
            issued += 1
    a.auto = True
    a.vm = []
    stamp(a, 4)
    a("s_barrier")
    a("v_and_b32 %s, 15, %s" % (vr(T), vr(L2)))
    a("v_lshrrev_b32 %s, 4, %s" % (vr(T + 2), vr(L2)))
    a("v_mul_u32_u24 %s, 320, %s" % (vr(T + 4), vr(T)))
    a("v_lshl_add_u32 %s, %s, 4, %s" % (vr(T + 4), vr(T + 2), vr(T + 4)))
    a("v_mul_u32_u24 %s, 20480, %s" % (vr(T + 5), vr(W2)))
    a("v_add_u32 %s, %s, %s" % (vr(T + 4), vr(T + 4), vr(T + 5)))
    for t in range(5):
        for i in range(4):
            ac = ACC2 + (t * 4 + i) * 4
            a("ds_write_b128 %s, %s offset:%d" % (vr(T + 4), vr(ac, 4), i * 16 * 320 + t * 64))
    make_srd(a, 28, 4, 2048 * 1280)
    make_srd(a, 32, 20, 2048 * 1280)
    a("s_mov_b32 s49, 0x1999999a")
    a("s_lshl_b32 s48, s51, 6")
    a("s_mul_i32 s50, s52, 160")
    for q in range(3):
        o = 10 * q
        a("v_add_u32 %s, %d, %s" % (vr(T), 256 * q, vr(TID)))
        a("v_mul_hi_u32 %s, %s, s49" % (vr(T + 1), vr(T)))
        a("v_mul_u32_u24 %s, 10, %s" % (vr(T + 2), vr(T + 1)))
        a("v_sub_u32 %s, %s, %s" % (vr(T + 2), vr(T), vr(T + 2)))
        a("v_mul_u32_u24 %s, 320, %s" % (vr(T + 3), vr(T + 1)))
        a("v_lshl_add_u32 %s, %s, 5, %s" % (vr(100 + q), vr(T + 2), vr(T + 3)))
        a("v_add_u32 %s, s48, %s" % (vr(T + 1), vr(T + 1)))
        a("v_mul_u32_u24 %s, 1280, %s" % (vr(T + 1), vr(T + 1)))
        a("v_lshl_add_u32 %s, %s, 4, %s" % (vr(T + 1), vr(T + 2), vr(T + 1)))
        a("v_add_u32 %s, s50, %s" % (vr(104 + q), vr(T + 1)))
        if q == 2:
            a("v_cmp_gt_u32 vcc, 640, %s" % vr(T))
            a("v_cndmask_b32 %s, 0, %s, vcc" % (vr(100 + q), vr(100 + q)))
            a("v_mov_b32 %s, 0x7fffff00" % vr(T + 4))
            a("v_cndmask_b32 %s, %s, %s, vcc" % (vr(104 + q), vr(T + 4), vr(104 + q)))
        a("buffer_load_dwordx4 %s, %s, s[28:31], 0 offen" % (vr(108 + 4 * q, 4), vr(104 + q)))
    a("s_waitcnt lgkmcnt(0)")
    a("s_barrier")
    for q in range(3):
        B = 128 + 32 * q
        for w in range(4):
            a("ds_read_b128 %s, %s offset:%d" % (vr(B + 8 * w, 4), vr(100 + q), w * 20480))
            a("ds_read_b128 %s, %s offset:%d" % (vr(B + 8 * w + 4, 4), vr(100 + q), w * 20480 + 16))
    for q in range(3):
        B = 128 + 32 * q
        for r in range(0, 8, 2):
            a(pk("add", B + r, vr(B + r, 2), vr(B + 8 + r, 2)))
            a(pk("add", B + 16 + r, vr(B + 16 + r, 2), vr(B + 24 + r, 2)))
        for r in range(0, 8, 2):
            a(pk("add", B + r, vr(B + r, 2), vr(B + 16 + r, 2)))
        for r in range(4):
            a("v_lshlrev_b32 %s, 16, %s" % (vr(B + 8 + 2 * r), vr(108 + 4 * q + r)))
            a("v_and_b32 %s, 0xffff0000, %s" % (vr(B + 9 + 2 * r), vr(108 + 4 * q + r)))
        for r in range(0, 8, 2):
            a(pk("add", B + r, vr(B + r, 2), vr(B + 8 + r, 2)))
        for r in range(4):
            a("v_cvt_pk_bf16_f32 %s, %s, %s" % (vr(B + 16 + r), vr(B + 2 * r), vr(B + 2 * r + 1)))
        a("buffer_store_dwordx4 %s, %s, s[32:35], 0 offen" % (vr(B + 16, 4), vr(104 + q)))
    a("s_waitcnt vmcnt(0)")
    dump_stamps(a, 6, 0x1210000)
    a.label("Lk2_exit")
    a("s_endpgm")


def kd(name, vgpr):
    return """.amdhsa_kernel %s
  .amdhsa_next_free_vgpr %d
  .amdhsa_next_free_sgpr 96
  .amdhsa_accum_offset %d
  .amdhsa_group_segment_fixed_size 0
  .amdhsa_kernarg_size 88
  .amdhsa_user_sgpr_count 2
  .amdhsa_user_sgpr_kernarg_segment_ptr 1
  .amdhsa_system_sgpr_workgroup_id_x 1
  .amdhsa_float_denorm_mode_32 3
.end_amdhsa_kernel
""" % (name, vgpr, (vgpr + 3) // 4 * 4)


def main():
    out = []
    out.append("; @launch kernel=k1_kernel grid=(256,1,1) block=(512,1,1) lds=%d" % K1_LDS)
    out.append("; @launch kernel=k2_kernel grid=(256,1,1) block=(256,1,1) lds=%d" % K2_LDS)
    out.append('.amdgcn_target "amdgcn-amd-amdhsa--gfx950"')
    out.append(".text")
    for nm, g in (("k1_kernel", gen_k1), ("k2_kernel", gen_k2)):
        a = Asm()
        g(a)
        out.append(".globl %s" % nm)
        out.append(".p2align 8")
        out.append(".type %s,@function" % nm)
        out.append(a.text())
    out.append('.section .rodata,"a"')
    for nm, v in (("k1_kernel", 256), ("k2_kernel", 256)):
        out.append(".p2align 6")
        out.append(kd(nm, v))
    path = os.environ.get("GENOUT", "cdna_kernels/%s.s" % NAME)
    open(path, "w").write("\n".join(out))
    print("wrote", path, sum(len(x) for x in out))


if __name__ == "__main__":
    main()
```

```python
import sys, os, struct
sys.path.insert(0, os.path.dirname(os.path.abspath(__file__)))
from asmdsl import Asm, vr, sr

FL = set(os.environ.get("GENFLAGS", "").split(","))
NAME = "parallel_sum__linear_kernel_hedgehog__glu_gated_geglu__prompt"

WS_HF = 0x000000
WS_PQF = 0x600000
WS_OF = 0xB00000
WS_W2F = 0xE00000
WS_KVA = 0x1100000
WS_ST = 0x1120000
WS_CS = 0x1128000
WS_FLG = 0x1130000
HF_BYTES = 128 * 48 * 1024
PQF_BYTES = 128 * 40 * 1024
OF_BYTES = 128 * 24 * 1024
W2F_BYTES = 8 * 72 * 5 * 1024
KVA_BYTES = 32 * 840 * 4
ST_BYTES = 2048 * 8
CS_BYTES = 4992 * 4

WSLOT = 24576
LDS_X = 4 * WSLOT
LDS_WPHI = LDS_X + 49152
LDS_ZERO = LDS_WPHI + 12800
LDS_DUMMY = LDS_ZERO + 64
K1_LDS = 163840
LOG2E = 1.4426950408889634
NPROD = 220


def f2u(x):
    return struct.unpack("<I", struct.pack("<f", x))[0]


def stamp(a, k):
    if "ts" not in FL:
        return
    a("s_waitcnt lgkmcnt(0)")
    a("s_memtime s[%d:%d]" % (70 + 2 * k, 71 + 2 * k))
    a("s_waitcnt lgkmcnt(0)")


def dump_stamps(a, n, base):
    if "ts" not in FL:
        return
    stamp(a, n - 1)
    a("s_add_u32 s56, s24, 0x%x" % base)
    a("s_addc_u32 s57, s25, 0")
    a("s_and_b32 s57, s57, 0xffff")
    a("s_mov_b32 s58, 0x10000")
    a("s_mov_b32 s59, 0x00020000")
    a("s_cmp_lg_u32 s47, 0")
    lab = "Lts%d" % len(a.lines)
    a("s_cbranch_scc1 %s" % lab)
    a("s_lshl_b32 s48, s2, 7")
    a("v_mov_b32 v1, s48")
    a("s_mov_b64 exec, 1")
    for k in range(n):
        a("v_mov_b32 v2, s%d" % (70 + 2 * k))
        a("v_mov_b32 v3, s%d" % (71 + 2 * k))
        a("buffer_store_dwordx2 v[2:3], v1, s[56:59], 0 offen offset:%d" % (8 * k))
    a("s_mov_b64 exec, -1")
    a.label(lab)


def load_kernargs(a):
    a("s_load_dwordx16 s[4:19], s[0:1], 0")
    a("s_load_dwordx4 s[20:23], s[0:1], 64")
    a("s_load_dwordx2 s[24:25], s[0:1], 80")


def make_srd(a, d, base, nbytes, off=0):
    if off:
        a("s_add_u32 s%d, s%d, 0x%x" % (d, base, off))
        a("s_addc_u32 s%d, s%d, 0" % (d + 1, base + 1))
        a("s_and_b32 s%d, s%d, 0xffff" % (d + 1, d + 1))
    else:
        a("s_mov_b32 s%d, s%d" % (d, base))
        a("s_and_b32 s%d, s%d, 0xffff" % (d + 1, base + 1))
    a("s_mov_b32 s%d, 0x%x" % (d + 2, nbytes))
    a("s_mov_b32 s%d, 0x00020000" % (d + 3))


def swap_add(a, x, t1, t2, which):
    a("v_mov_b32 %s, %s" % (vr(t1), vr(x)))
    a("v_mov_b32 %s, %s" % (vr(t2), vr(x)))
    a("v_permlane%d_swap_b32 %s, %s" % (which, vr(t1), vr(t2)))
    a("v_add_f32 %s, %s, %s" % (vr(x), vr(t1), vr(t2)))


def rnd2(a, x, y, t):
    a("v_cvt_pk_bf16_f32 %s, %s, %s" % (vr(t), vr(x), vr(y)))
    a("v_lshlrev_b32 %s, 16, %s" % (vr(x), vr(t)))
    a("v_and_b32 %s, 0xffff0000, %s" % (vr(y), vr(t)))


def split3(a, c, d0, t1, t2, t3):
    a("v_cvt_pk_bf16_f32 %s, %s, %s" % (vr(t1), vr(c), vr(c)))
    a("v_lshlrev_b32 %s, 16, %s" % (vr(t3), vr(t1)))
    a("v_sub_f32 %s, %s, %s" % (vr(c), vr(c), vr(t3)))
    a("v_cvt_pk_bf16_f32 %s, %s, %s" % (vr(t2), vr(c), vr(c)))
    a("v_lshlrev_b32 %s, 16, %s" % (vr(t3), vr(t2)))
    a("v_sub_f32 %s, %s, %s" % (vr(c), vr(c), vr(t3)))
    a("v_cvt_pk_bf16_f32 %s, %s, %s" % (vr(t3), vr(c), vr(c)))
    a("v_and_b32 %s, 0xffff, %s" % (vr(t1), vr(t1)))
    a("v_lshl_or_b32 %s, %s, 16, %s" % (vr(t1), vr(t2), vr(t1)))
    a("v_and_b32 %s, 0xffff, %s" % (vr(t3), vr(t3)))
    a("v_cndmask_b32 %s, 0, %s, vcc" % (vr(d0), vr(t1)))
    a("v_cndmask_b32 %s, 0, %s, vcc" % (vr(d0 + 1), vr(t3)))
    a("v_mov_b32 %s, 0" % vr(d0 + 2))
    a("v_mov_b32 %s, 0" % vr(d0 + 3))


class Rec:
    def __init__(self):
        self.l = []

    def __call__(self, t):
        self.l.append(t)

    def comment(self, t):
        pass


def merge(a, *recs):
    ls = [list(r.l) for r in recs]
    n = max(len(l) for l in ls)
    idx = [0] * len(ls)
    for k in range(1, n + 1):
        for q, l in enumerate(ls):
            tgt = (len(l) * k + n - 1) // n
            while idx[q] < min(tgt, len(l)):
                a(l[idx[q]])
                idx[q] += 1


def mfma(a, d, A, B, C):
    a("v_mfma_f32_16x16x32_bf16 %s, %s, %s, %s" % (vr(d, 4), vr(A, 4), vr(B, 4), "0" if C is None else vr(C, 4)))


ACC = 0
FB = 96
VOFFW = 192
VOFFX = 195
VXB = 197
VWB = 199
VL = 207
VW = 208
VTID = 209
T0 = 210
RS = 230
MF = 238


def signal(a, L, target_srd):
    a("s_cmp_ge_u32 s2, %d" % NPROD)
    a("s_cbranch_scc1 %s" % L)
    a("s_cmp_lg_u32 s47, 0")
    a("s_cbranch_scc1 %s" % L)
    a("v_mov_b32 %s, 1" % vr(T0))
    a("v_mov_b32 %s, 0" % vr(T0 + 1))
    a("s_mov_b64 exec, 1")
    a("buffer_atomic_add %s, %s, s[%d:%d], 0 offen sc1" % (vr(T0), vr(T0 + 1), target_srd, target_srd + 3))
    a("s_mov_b64 exec, -1")
    a.label(L)
    a.hist = []


PB = 214


def pre_issue(a, L):
    make_srd(a, 60, 22, 256)
    a("s_cmp_lg_u32 s2, %d" % NPROD)
    a("s_cbranch_scc1 %spp_nf" % L)
    make_srd(a, 56, 24, 4096, WS_FLG)
    a("v_lshlrev_b32 v1, 4, %s" % vr(VTID))
    for r in range(4):
        a("v_mov_b32 %s, 0" % vr(8 + r))
    a("buffer_store_dwordx4 v[8:11], v1, s[56:59], 0 offen")
    a.label(L + "pp_nf")
    a.hist = []
    a("s_cmp_ge_u32 s2, %d" % NPROD)
    a("s_cbranch_scc1 %spp_done" % L)
    a("s_cmp_ge_u32 s2, 206")
    a("s_cbranch_scc1 %spp_zero" % L)
    a("s_cmp_ge_u32 s2, 78")
    a("s_cbranch_scc1 %spp_stats" % L)
    make_srd(a, 56, 6, 640 * 3840)
    a("s_movk_i32 s54, 3840")
    a("s_lshl_b32 s55, s2, 7")
    a("s_cmp_lt_u32 s2, 30")
    a("s_cbranch_scc1 %spp_cs" % L)
    make_srd(a, 56, 14, 640 * 3072)
    a("s_movk_i32 s54, 3072")
    a("s_sub_u32 s55, s55, %d" % (30 * 128))
    a("s_cmp_lt_u32 s2, 54")
    a("s_cbranch_scc1 %spp_cs" % L)
    make_srd(a, 56, 16, 640 * 3072)
    a("s_sub_u32 s55, s55, %d" % (24 * 128))
    a.label(L + "pp_cs")
    a.hist = []
    a("v_and_b32 v1, 31, %s" % vr(VTID))
    a("v_lshrrev_b32 v2, 5, %s" % vr(VTID))
    a("v_mul_lo_u32 v2, v2, s54")
    a("v_lshl_add_u32 v2, v1, 2, v2")
    a("v_add_u32 v2, s55, v2")
    a("s_lshl_b32 s54, s54, 4")
    a("s_mov_b32 s55, 0")
    for i in range(40):
        a("buffer_load_dword %s, v2, s[56:59], s55 offen" % vr(PB + i))
        if i < 39:
            a("s_add_u32 s55, s55, s54")
    a("s_branch %spp_done" % L)
    a.label(L + "pp_stats")
    a.hist = []
    a("s_sub_u32 s54, s2, 78")
    a("s_lshl_b32 s54, s54, 4")
    a("v_lshrrev_b32 v1, 5, %s" % vr(VTID))
    a("v_add_u32 v1, s54, v1")
    a("v_and_b32 v2, 31, %s" % vr(VTID))
    a("v_mul_u32_u24 v3, 40, v2")
    a("s_movk_i32 s55, 1280")
    a("v_mul_lo_u32 v4, v1, s55")
    a("v_add_u32 v3, v3, v4")
    a("buffer_load_dwordx4 %s, v3, s[28:31], 0 offen" % vr(PB, 4))
    a("buffer_load_dwordx4 %s, v3, s[28:31], 0 offen offset:16" % vr(PB + 4, 4))
    a("buffer_load_dwordx2 %s, v3, s[28:31], 0 offen offset:32" % vr(PB + 8, 2))
    a("s_branch %spp_done" % L)
    a.label(L + "pp_zero")
    a.hist = []
    make_srd(a, 56, 24, KVA_BYTES, WS_KVA)
    a("s_sub_u32 s54, s2, 206")
    a("s_mul_i32 s54, s54, 7680")
    a("v_lshlrev_b32 v1, 4, %s" % vr(VTID))
    a("v_add_u32 v1, s54, v1")
    a("v_mov_b32 v3, 0x7fffff00")
    a("v_cmp_gt_u32 vcc, 480, %s" % vr(VTID))
    a("v_cndmask_b32 v1, v3, v1, vcc")
    for r in range(4):
        a("v_mov_b32 %s, 0" % vr(8 + r))
    a("buffer_store_dwordx4 v[8:11], v1, s[56:59], 0 offen sc1")
    a.label(L + "pp_done")
    a.hist = []
    a.vm = []
    a.lg = []


def pre_stage1(a, L):
    t = T0
    lg_save = list(a.lg)
    a("s_cmp_ge_u32 s2, 206")
    a("s_cbranch_scc1 %sp1_done" % L)
    a("s_cmp_ge_u32 s2, 78")
    a("s_cbranch_scc1 %sp1_stats" % L)
    a("v_lshlrev_b32 %s, 16, %s" % (vr(t), vr(PB)))
    a("v_and_b32 %s, 0xffff0000, %s" % (vr(t + 1), vr(PB)))
    for i in range(1, 40):
        a("v_lshlrev_b32 %s, 16, %s" % (vr(t + 2), vr(PB + i)))
        a("v_and_b32 %s, 0xffff0000, %s" % (vr(t + 3), vr(PB + i)))
        a("v_pk_add_f32 %s, %s, %s" % (vr(t, 2), vr(t, 2), vr(t + 2, 2)))
    swap_add(a, t, t + 2, t + 3, 32)
    swap_add(a, t + 1, t + 2, t + 3, 32)
    a("v_and_b32 %s, 31, %s" % (vr(PB), vr(VTID)))
    a("v_lshlrev_b32 %s, 3, %s" % (vr(PB), vr(PB)))
    a("v_lshl_add_u32 %s, %s, 8, %s" % (vr(t + 2), vr(VW), vr(PB)))
    a("v_add_u32 %s, %d, %s" % (vr(t + 2), LDS_WPHI, vr(t + 2)))
    a("ds_write_b64 %s, %s" % (vr(t + 2), vr(t, 2)))
    a("s_waitcnt lgkmcnt(0)")
    a("s_branch %sp1_done" % L)
    a.label(L + "p1_stats")
    a.hist = []
    S = PB + 12
    for r in range(4):
        a("v_mov_b32 %s, 0" % vr(S + r))
    for i in range(10):
        a("v_lshlrev_b32 %s, 16, %s" % (vr(t), vr(PB + i)))
        a("v_and_b32 %s, 0xffff0000, %s" % (vr(t + 1), vr(PB + i)))
        a("v_pk_add_f32 %s, %s, %s" % (vr(S, 2), vr(S, 2), vr(t, 2)))
        a("v_pk_fma_f32 %s, %s, %s, %s" % (vr(S + 2, 2), vr(t, 2), vr(t, 2), vr(S + 2, 2)))
    a("v_add_f32 %s, %s, %s" % (vr(S), vr(S), vr(S + 1)))
    a("v_add_f32 %s, %s, %s" % (vr(S + 2), vr(S + 2), vr(S + 3)))
    for ro in (8, 4, 2, 1):
        a("v_add_f32_dpp %s, %s, %s row_ror:%d row_mask:0xf bank_mask:0xf" % (vr(S), vr(S), vr(S), ro))
        a("v_add_f32_dpp %s, %s, %s row_ror:%d row_mask:0xf bank_mask:0xf" % (vr(S + 2), vr(S + 2), vr(S + 2), ro))
    swap_add(a, S, t, t + 1, 16)
    swap_add(a, S + 2, t, t + 1, 16)
    a("s_mov_b32 s55, 0x%x" % f2u(1.0 / 640.0))
    a("v_mul_f32 %s, s55, %s" % (vr(S), vr(S)))
    a("v_mul_f32 %s, s55, %s" % (vr(S + 2), vr(S + 2)))
    a("v_fma_f32 %s, -%s, %s, %s" % (vr(S + 2), vr(S), vr(S), vr(S + 2)))
    a("v_max_f32 %s, 0, %s" % (vr(S + 2), vr(S + 2)))
    a("v_cvt_pk_bf16_f32 %s, %s, %s" % (vr(t), vr(S), vr(S + 2)))
    a("v_lshlrev_b32 %s, 16, %s" % (vr(PB + 1), vr(t)))
    a("v_and_b32 %s, 0xffff0000, %s" % (vr(t + 1), vr(t)))
    a("v_add_f32 %s, 0x%x, %s" % (vr(t + 1), f2u(1e-5), vr(t + 1)))
    a("v_cvt_pk_bf16_f32 %s, %s, %s" % (vr(t + 1), vr(t + 1), vr(t + 1)))
    a("v_lshlrev_b32 %s, 16, %s" % (vr(t + 1), vr(t + 1)))
    a("v_sqrt_f32 %s, %s" % (vr(t + 1), vr(t + 1)))
    a("v_cvt_pk_bf16_f32 %s, %s, %s" % (vr(t + 1), vr(t + 1), vr(t + 1)))
    a("v_lshlrev_b32 %s, 16, %s" % (vr(t + 1), vr(t + 1)))
    a("v_rcp_f32 %s, %s" % (vr(PB), vr(t + 1)))
    make_srd(a, 56, 24, ST_BYTES, WS_ST)
    a("s_sub_u32 s54, s2, 78")
    a("s_lshl_b32 s54, s54, 4")
    a("v_lshrrev_b32 %s, 5, %s" % (vr(t + 2), vr(VTID)))
    a("v_add_u32 %s, s54, %s" % (vr(t + 2), vr(t + 2)))
    a("v_lshlrev_b32 %s, 3, %s" % (vr(t + 2), vr(t + 2)))
    a("v_and_b32 %s, 31, %s" % (vr(t), vr(VTID)))
    a("v_mov_b32 %s, 0x7fffff00" % vr(t + 3))
    a("v_cmp_eq_u32 vcc, 0, %s" % vr(t))
    a("v_cndmask_b32 %s, %s, %s, vcc" % (vr(t + 2), vr(t + 3), vr(t + 2)))
    a("buffer_store_dwordx2 %s, %s, s[56:59], 0 offen sc1" % (vr(PB, 2), vr(t + 2)))
    a.label(L + "p1_done")
    a.hist = []
    a.lg = lg_save


def pre_stage2(a, L):
    t = T0
    lg_save = list(a.lg)
    a("s_cmp_ge_u32 s2, 78")
    a("s_cbranch_scc1 %sp2_done" % L)
    a("s_waitcnt lgkmcnt(0)")
    a.lg = []
    a("v_add_u32 %s, %d, %s" % (vr(t + 2), LDS_WPHI, vr(PB)))
    for w in range(8):
        a("ds_read_b64 %s, %s offset:%d" % (vr(PB + 2 + 2 * w, 2), vr(t + 2), w * 256))
    for w in range(1, 8):
        a("v_pk_add_f32 %s, %s, %s" % (vr(PB + 2, 2), vr(PB + 2, 2), vr(PB + 2 + 2 * w, 2)))
    make_srd(a, 56, 24, CS_BYTES, WS_CS)
    a("s_lshl_b32 s55, s2, 8")
    a("v_add_u32 %s, s55, %s" % (vr(t), vr(PB)))
    a("v_mov_b32 %s, 0x7fffff00" % vr(t + 3))
    a("v_cmp_gt_u32 vcc, 32, %s" % vr(VTID))
    a("v_cndmask_b32 %s, %s, %s, vcc" % (vr(t), vr(t + 3), vr(t)))
    a("buffer_store_dwordx2 %s, %s, s[56:59], 0 offen sc1" % (vr(PB + 2, 2), vr(t)))
    a.label(L + "p2_done")
    a.hist = []
    a.lg = lg_save


def wait_flag(a, L, srd, off, target):
    a("v_mov_b32 %s, %d" % (vr(T0), off))
    a("s_mov_b32 s49, 0")
    a.label(L)
    a.hist = []
    a("buffer_load_dword %s, %s, s[%d:%d], 0 offen sc1" % (vr(T0 + 1), vr(T0), srd, srd + 3))
    a("s_waitcnt vmcnt(0)")
    a("v_readfirstlane_b32 s48, %s" % vr(T0 + 1))
    a("s_cmp_ge_u32 s48, %d" % target)
    a("s_cbranch_scc1 %s_ok" % L)
    a("s_sleep 8")
    a("s_add_u32 s49, s49, 1")
    a("s_cmp_lt_u32 s49, 0x10000")
    a("s_cbranch_scc1 %s" % L)
    a.label(L + "_ok")
    a.hist = []


def k1_path(a, T):
    NI = {"GU": 4, "KV": 2, "Q": 2}[T]
    NT = {"GU": 6, "KV": 10, "Q": 5}[T]
    HALF = {"GU": 3, "KV": 5, "Q": 5}[T]
    rowb = 3072 if T == "GU" else 3840
    L = "L%s_" % T
    nacc = NT * NI * 4

    def acc(t, i):
        return ACC + (t * NI + i) * 4

    a.comment("==== K1 path %s" % T)
    stamp(a, 0)
    a("v_mov_b32 %s, v0" % vr(VTID))
    a("v_and_b32 %s, 63, v0" % vr(VL))
    a("v_lshrrev_b32 %s, 6, v0" % vr(VW))
    a("v_readfirstlane_b32 s47, %s" % vr(VW))
    a("s_lshl_b32 s46, s47, 10")
    make_srd(a, 28, 4, 2048 * 1280)
    a("v_lshrrev_b32 %s, 3, %s" % (vr(T0), vr(VL)))
    a("v_and_b32 %s, 7, %s" % (vr(T0 + 1), vr(VL)))
    a("v_xor_b32 %s, %s, %s" % (vr(T0 + 2), vr(T0 + 1), vr(T0)))
    a("s_lshl_b32 s48, s51, 7")
    a("v_lshl_add_u32 %s, %s, 3, %s" % (vr(T0 + 3), vr(VW), vr(T0)))
    a("v_add_u32 %s, s48, %s" % (vr(T0 + 3), vr(T0 + 3)))
    a("s_movk_i32 s49, 1280")
    a("v_mul_lo_u32 %s, %s, s49" % (vr(T0 + 3), vr(T0 + 3)))
    a("v_lshl_add_u32 %s, %s, 4, %s" % (vr(VOFFX), vr(T0 + 2), vr(T0 + 3)))
    a("v_add_u32 %s, %d, %s" % (vr(VOFFX + 1), 64 * 1280, vr(VOFFX)))
    a("v_and_b32 %s, 3, %s" % (vr(T0 + 3), vr(VW)))
    a("v_bfe_u32 %s, %s, 1, 1" % (vr(T0 + 4), vr(T0)))
    a("v_and_b32 %s, 1, %s" % (vr(T0 + 5), vr(T0 + 3)))
    a("v_lshl_add_u32 %s, %s, 1, %s" % (vr(T0 + 4), vr(T0 + 5), vr(T0 + 4)))
    a("v_lshlrev_b32 %s, 1, %s" % (vr(T0 + 4), vr(T0 + 4)))
    a("v_xor_b32 %s, %s, %s" % (vr(T0 + 4), vr(T0 + 1), vr(T0 + 4)))
    a("v_lshl_add_u32 %s, %s, 3, %s" % (vr(T0 + 5), vr(T0 + 3), vr(T0)))
    a("s_movk_i32 s49, %d" % rowb)
    a("v_mul_lo_u32 %s, %s, s49" % (vr(T0 + 5), vr(T0 + 5)))
    a("v_lshl_add_u32 %s, %s, 4, %s" % (vr(T0 + 5), vr(T0 + 4), vr(T0 + 5)))
    a("v_lshrrev_b32 %s, 2, %s" % (vr(T0 + 6), vr(VW)))
    a("v_lshl_add_u32 %s, %s, 7, %s" % (vr(T0 + 5), vr(T0 + 6), vr(T0 + 5)))
    if T == "GU":
        a("s_mul_i32 s48, s52, 384")
        a("v_add_u32 %s, s48, %s" % (vr(VOFFW), vr(T0 + 5)))
        a("v_mov_b32 %s, 256" % vr(T0 + 7))
        a("v_mov_b32 %s, 0xffffff80" % vr(T0 + 8))
        a("v_cmp_eq_u32 vcc, 0, %s" % vr(T0 + 6))
        a("v_cndmask_b32 %s, %s, %s, vcc" % (vr(T0 + 7), vr(T0 + 8), vr(T0 + 7)))
        a("v_add_u32 %s, %s, %s" % (vr(VOFFW + 1), vr(T0 + 7), vr(VOFFW)))
        a("v_add_u32 %s, 128, %s" % (vr(VOFFW + 2), vr(VOFFW)))
        make_srd(a, 32, 14, 640 * 3072)
        make_srd(a, 36, 16, 640 * 3072)
        make_srd(a, 40, 14, 640 * 3072)
        a("s_cmp_lt_u32 s47, 4")
        a("s_cselect_b32 s40, s40, s36")
        a("s_cselect_b32 s41, s41, s37")
        srdw = [32, 40, 36]
    else:
        a("s_mul_i32 s48, s52, 80")
        a("s_and_b32 s48, s48, 0xffc0")
        a("s_lshl_b32 s48, s48, 1")
        a("v_add_u32 %s, s48, %s" % (vr(VOFFW), vr(T0 + 5)))
        a("v_add_u32 %s, 1280, %s" % (vr(VOFFW + 1), vr(VOFFW)))
        a("v_add_u32 %s, 2560, %s" % (vr(VOFFW + 2), vr(VOFFW)))
        make_srd(a, 32, 6, 640 * 3840)
        srdw = [32, 32, 32]
    a("s_mov_b32 s44, 0")
    a("s_mov_b32 s45, 0")

    lab = [0]

    def loadW(slot):
        for i in range(3):
            a("s_add_u32 m0, s46, 0x%x" % (slot * WSLOT + i * 8192))
            a("buffer_load_dwordx4 %s, s[%d:%d], s45 offen lds" % (vr(VOFFW + i), srdw[i], srdw[i] + 3))
        a("s_add_u32 s45, s45, %d" % (32 * rowb))

    def loadX(slot):
        for i in range(2):
            a("s_add_u32 m0, s46, 0x%x" % (LDS_X + slot * 16384 + i * 8192))
            a("buffer_load_dwordx4 %s, s[28:31], s44 offen lds" % vr(VOFFX + i))
        a("s_add_u32 s44, s44, 128")

    nW = 3
    groups = []

    def need(names):
        if not any(n in names for (n, c) in groups):
            return 0
        last = max(i for i, (n, c) in enumerate(groups) if n in names)
        return sum(c for (n, c) in groups[last + 1:])

    loadX(0); groups.append(("x0", 2))
    loadW(0); groups.append(("w0", nW))
    loadX(1); groups.append(("x1", 2))
    loadW(1); groups.append(("w1", nW))
    loadW(2); groups.append(("w2", nW))
    if T == "GU":
        wmsh, wnmask = 2, 3
    else:
        wmsh, wnmask = 0, 0
    a("v_and_b32 %s, 15, %s" % (vr(T0), vr(VL)))
    a("v_lshrrev_b32 %s, 4, %s" % (vr(T0 + 1), vr(VL)))
    a("v_lshrrev_b32 %s, %d, %s" % (vr(T0 + 3), wmsh, vr(VW)))
    if T != "GU":
        a("v_and_b32 %s, 3, %s" % (vr(T0 + 3), vr(T0 + 3)))
    a("v_and_b32 %s, %d, %s" % (vr(T0 + 4), wnmask, vr(VW)))
    a("v_and_b32 %s, 7, %s" % (vr(T0 + 5), vr(T0)))
    a("v_mul_u32_u24 %s, %d, %s" % (vr(T0 + 6), NI * 2048, vr(T0 + 3)))
    a("v_lshl_add_u32 %s, %s, 7, %s" % (vr(T0 + 6), vr(T0), vr(T0 + 6)))
    a("v_add_u32 %s, %d, %s" % (vr(T0 + 6), LDS_X, vr(T0 + 6)))
    for pk in range(2):
        a("v_add_u32 %s, %d, %s" % (vr(T0 + 7), 4 * pk, vr(T0 + 1)))
        a("v_xor_b32 %s, %s, %s" % (vr(T0 + 7), vr(T0 + 7), vr(T0 + 5)))
        a("v_lshl_add_u32 %s, %s, 4, %s" % (vr(VXB + pk), vr(T0 + 7), vr(T0 + 6)))
    a("v_bfe_u32 %s, %s, 3, 1" % (vr(T0 + 5), vr(T0)))
    a("v_and_b32 %s, 1, %s" % (vr(T0 + 6), vr(T0 + 1)))
    a("v_lshl_add_u32 %s, %s, 1, %s" % (vr(T0 + 5), vr(T0 + 6), vr(T0 + 5)))
    a("v_lshrrev_b32 %s, 2, %s" % (vr(T0 + 6), vr(T0)))
    a("v_lshl_add_u32 %s, %s, 3, %s" % (vr(T0 + 6), vr(T0 + 1), vr(T0 + 6)))
    a("v_lshlrev_b32 %s, 7, %s" % (vr(T0 + 6), vr(T0 + 6)))
    a("v_and_b32 %s, 3, %s" % (vr(T0 + 7), vr(T0)))
    a("v_lshl_add_u32 %s, %s, 3, %s" % (vr(T0 + 6), vr(T0 + 7), vr(T0 + 6)))
    a("v_mul_u32_u24 %s, %d, %s" % (vr(T0 + 7), HALF, vr(T0 + 4)))
    if T != "GU":
        a("s_mul_i32 s48, s52, 5")
        a("s_and_b32 s48, s48, 3")
        if T == "KV":
            a("s_add_u32 s48, s48, 8")
        a("v_add_u32 %s, s48, %s" % (vr(T0 + 7), vr(T0 + 7)))
    for j in range(4):
        a("v_add_u32 %s, %d, %s" % (vr(T0 + 8), j, vr(T0 + 7)))
        a("v_and_b32 %s, 3, %s" % (vr(T0 + 9), vr(T0 + 8)))
        a("v_xor_b32 %s, %s, %s" % (vr(T0 + 9), vr(T0 + 9), vr(T0 + 5)))
        a("v_lshl_add_u32 %s, %s, 5, %s" % (vr(T0 + 9), vr(T0 + 9), vr(T0 + 6)))
        a("v_lshrrev_b32 %s, 2, %s" % (vr(T0 + 8), vr(T0 + 8)))
        a("v_lshl_add_u32 %s, %s, 12, %s" % (vr(VWB + 2 * j), vr(T0 + 8), vr(T0 + 9)))
        a("v_add_u32 %s, 0x10000, %s" % (vr(VWB + 2 * j + 1), vr(VWB + 2 * j)))

    if T != "GU":
        nb = 4 * 800
        make_srd(a, 36, 8, 32 * 800)
        a("s_mul_i32 s48, s52, %d" % nb)
        a("v_lshlrev_b32 %s, 4, %s" % (vr(T0), vr(VTID)))
        a("v_add_u32 %s, s48, %s" % (vr(T0 + 1), vr(T0)))
        a("buffer_load_dwordx4 v[96:99], %s, s[36:39], 0 offen" % vr(T0 + 1))
        if nb > 8192:
            a("v_add_u32 %s, 8192, %s" % (vr(T0 + 2), vr(T0 + 1)))
            a("buffer_load_dwordx4 v[100:103], %s, s[36:39], 0 offen" % vr(T0 + 2))

    pre_issue(a, L)
    if T == "GU":
        repack_job(a, True)
    if T != "GU":
        nb = 4 * 800
        a("s_waitcnt vmcnt(0)")
        a.vm = []
        a("v_lshlrev_b32 %s, 4, %s" % (vr(T0), vr(VTID)))
        a("v_add_u32 %s, %d, %s" % (vr(T0 + 1), LDS_WPHI, vr(T0)))
        a("v_mov_b32 %s, %d" % (vr(T0 + 3), LDS_DUMMY))
        if nb > 8192:
            a("ds_write_b128 %s, v[96:99]" % vr(T0 + 1))
            a("v_add_u32 %s, 8192, %s" % (vr(T0 + 2), vr(T0 + 1)))
            a("v_cmp_gt_u32 vcc, %d, %s" % (nb - 8192, vr(T0)))
            a("v_cndmask_b32 %s, %s, %s, vcc" % (vr(T0 + 2), vr(T0 + 3), vr(T0 + 2)))
            a("ds_write_b128 %s, v[100:103]" % vr(T0 + 2))
        else:
            a("v_cmp_gt_u32 vcc, %d, %s" % (nb, vr(T0)))
            a("v_cndmask_b32 %s, %s, %s, vcc" % (vr(T0 + 1), vr(T0 + 3), vr(T0 + 1)))
            a("ds_write_b128 %s, v[96:99]" % vr(T0 + 1))
        for r in range(4):
            a("v_mov_b32 %s, 0" % vr(104 + r))
        a("v_and_b32 %s, 3, %s" % (vr(T0), vr(VTID)))
        a("v_lshlrev_b32 %s, 4, %s" % (vr(T0), vr(T0)))
        a("v_add_u32 %s, %d, %s" % (vr(T0), LDS_ZERO, vr(T0)))
        a("ds_write_b128 %s, v[104:107]" % vr(T0))
        a("s_waitcnt lgkmcnt(0)")
    a.vm = []
    stamp(a, 1)
    stamp(a, 2)
    for r in range(nacc):
        a("v_mov_b32 %s, 0" % vr(ACC + r))

    CSR = MF

    def stats_loads():
        make_srd(a, 56, 24, ST_BYTES, WS_ST)
        make_srd(a, 64, 24, CS_BYTES, WS_CS)
        a("v_and_b32 %s, 15, %s" % (vr(T0), vr(VL)))
        a("v_lshrrev_b32 %s, %d, %s" % (vr(T0 + 3), wmsh, vr(VW)))
        if T != "GU":
            a("v_and_b32 %s, 3, %s" % (vr(T0 + 3), vr(T0 + 3)))
        a("v_and_b32 %s, %d, %s" % (vr(T0 + 4), wnmask, vr(VW)))
        a("v_mul_u32_u24 %s, %d, %s" % (vr(T0 + 5), NI * 16, vr(T0 + 3)))
        a("v_add_u32 %s, %s, %s" % (vr(T0 + 5), vr(T0 + 5), vr(T0)))
        a("s_lshl_b32 s48, s51, 7")
        a("v_add_u32 %s, s48, %s" % (vr(T0 + 5), vr(T0 + 5)))
        a("v_lshlrev_b32 %s, 3, %s" % (vr(T0 + 5), vr(T0 + 5)))
        for i in range(NI):
            a("buffer_load_dwordx2 %s, %s, s[56:59], 0 offen offset:%d sc1" % (vr(RS + 2 * i, 2), vr(T0 + 5), 128 * i))
        if T == "GU":
            a("s_mul_i32 s48, s52, 192")
            a("s_add_u32 s48, s48, 1920")
            second = 1536
        elif T == "KV":
            a("s_mul_i32 s48, s52, 80")
            a("s_add_u32 s48, s48, 640")
            second = 640
        else:
            a("s_mul_i32 s48, s52, 80")
            second = 0
        a("v_mul_u32_u24 %s, %d, %s" % (vr(T0 + 6), 16 * HALF, vr(T0 + 4)))
        a("v_add3_u32 %s, %s, %s, s48" % (vr(T0 + 6), vr(T0 + 6), vr(T0)))
        a("v_lshlrev_b32 %s, 2, %s" % (vr(T0 + 6), vr(T0 + 6)))
        if second:
            a("v_add_u32 %s, %d, %s" % (vr(T0 + 7), second * 4, vr(T0 + 6)))
        for t in range(NT):
            j, up = t % HALF, t // HALF
            a("buffer_load_dword %s, %s, s[64:67], 0 offen offset:%d sc1" % (vr(CSR + t), vr(T0 + 7 if up else T0 + 6), 64 * j))

    FSZ = 48

    def rdfrags(s):
        fb = FB + (s & 1) * FSZ
        wb = (s & 3) * WSLOT
        xb = ((s >> 1) % 3) * 16384

        def rdx(i):
            a("ds_read_b128 %s, %s offset:%d" % (vr(fb + 4 * i, 4), vr(VXB + (s & 1)), xb + i * 2048))

        def rdw(t):
            j, up = t % HALF, t // HALF
            off = wb + (j >> 2) * 4096 + up * (12288 if T == "GU" else 8192)
            for h in range(2):
                o = off + h * 512
                a("ds_read_b64_tr_b16 %s, %s offset:%d" % (vr(fb + 4 * NI + 4 * t + 2 * h, 2), vr(VWB + 2 * (j & 3) + (o >> 16)), o & 0xFFFF))
        rdx(0)
        rdw(0)
        for i in range(1, NI):
            rdx(i)
        for t in range(1, NT):
            rdw(t)

    def mfmas(s):
        fb = FB + (s & 1) * FSZ
        for t in range(NT):
            for i in range(NI):
                if T == "KV" and t >= 5:
                    mfma(a, acc(t, i), fb + 4 * i, fb + 4 * NI + 4 * t, acc(t, i))
                else:
                    mfma(a, acc(t, i), fb + 4 * NI + 4 * t, fb + 4 * i, acc(t, i))

    a("s_waitcnt vmcnt(%d)" % need(["x0", "w0"]))
    a("s_barrier")
    a.vm = []
    rdfrags(0)
    for s in range(20):
        if s < 19:
            a("s_waitcnt vmcnt(%d)" % need(["x%d" % ((s + 1) >> 1), "w%d" % (s + 1)]))
            if s == 18:
                a("s_cmp_lg_u32 s47, 0")
                a("s_cbranch_scc1 %swf_ok" % L)
                a("v_readfirstlane_b32 s48, %s" % vr(T0 + 1))
                a("s_cmp_ge_u32 s48, %d" % NPROD)
                a("s_cbranch_scc1 %swf_ok" % L)
                wait_flag(a, L + "wf", 60, 0, NPROD)
            a("s_barrier")
            if s == 0:
                a("s_waitcnt vmcnt(0)")
                pre_stage1(a, L)
            if s == 1:
                pre_stage2(a, L)
            if s == 4:
                signal(a, L + "sig", 60)
            if s % 2 == 0 and s // 2 + 2 <= 9 and "noload" not in FL:
                loadX((s // 2 + 2) % 3); groups.append(("x%d" % (s // 2 + 2), 2))
            if s + 3 <= 19 and "noload" not in FL:
                loadW((s + 3) & 3); groups.append(("w%d" % (s + 3), nW))
            if s == 15:
                a("v_mov_b32 %s, 0" % vr(T0))
                a("buffer_load_dword %s, %s, s[60:63], 0 offen sc1" % (vr(T0 + 1), vr(T0)))
                groups.append(("fl", 1))
            if s == 18:
                stats_loads()
                groups.append(("st", NI + NT))
            a.vm = []
            if "nords" not in FL or s < 1:
                rdfrags(s + 1)
        mfmas(s)
    if "noepi" in FL:
        a("s_endpgm")
        return

    if T != "KV":
        a("s_barrier")
    stamp(a, 3)
    a("s_waitcnt vmcnt(0)")
    stamp(a, 4)
    WF = 96
    MFR = 136
    a("v_cmp_gt_u32 vcc, 16, %s" % vr(VL))
    for i in range(NI):
        a("v_lshrrev_b32 %s, 16, %s" % (vr(T0 + 2), vr(RS + 2 * i + 1)))
        a("v_xor_b32 %s, 0x8000, %s" % (vr(T0 + 2), vr(T0 + 2)))
        a("v_lshl_or_b32 %s, %s, 16, %s" % (vr(T0 + 3), vr(T0 + 2), vr(T0 + 2)))
        a("v_cndmask_b32 %s, 0, %s, vcc" % (vr(MFR + 4 * i), vr(T0 + 3)))
        a("v_cndmask_b32 %s, 0, %s, vcc" % (vr(MFR + 4 * i + 1), vr(T0 + 2)))
        a("v_mov_b32 %s, 0" % vr(MFR + 4 * i + 2))
        a("v_mov_b32 %s, 0" % vr(MFR + 4 * i + 3))
    for t in range(NT):
        split3(a, CSR + t, WF + 4 * t, T0 + 3 * (t % 3), T0 + 1 + 3 * (t % 3), T0 + 2 + 3 * (t % 3))
    for t in range(NT):
        for i in range(NI):
            if T == "KV" and t >= 5:
                mfma(a, acc(t, i), MFR + 4 * i, WF + 4 * t, acc(t, i))
            else:
                mfma(a, acc(t, i), WF + 4 * t, MFR + 4 * i, acc(t, i))
    stamp(a, 5)
    R = dict(NI=NI, NT=NT, acc=acc, L=L, wnmask=wnmask)
    {"GU": epi_gu, "Q": epi_q, "KV": epi_kv}[T](a, R)
    if T == "GU":
        repack_job(a)
    a("s_waitcnt vmcnt(0)")
    dump_stamps(a, 7, 0x1200000)
    a("s_endpgm")


def pk(op, d, x, y, z=None, bc=None):
    s = "v_pk_%s_f32 %s, %s, %s" % (op, vr(d, 2), x, y)
    if z is not None:
        s += ", " + z
    if bc:
        s += " op_sel_hi:[%s]" % ",".join(str(b) for b in bc)
    return s


def epi_gu(a, R):
    acc = R["acc"]
    make_srd(a, 40, 24, HF_BYTES, WS_HF)
    A0, A1 = 160, 161
    a("v_lshrrev_b32 %s, 2, %s" % (vr(T0), vr(VW)))
    a("v_mul_u32_u24 %s, 192, %s" % (vr(T0), vr(T0)))
    a("v_bfe_u32 %s, %s, 1, 1" % (vr(T0 + 1), vr(VW)))
    a("v_mul_u32_u24 %s, 3, %s" % (vr(T0 + 1), vr(T0 + 1)))
    a("s_mul_i32 s48, s51, 384")
    a("s_mul_i32 s49, s52, 6")
    a("s_add_u32 s48, s48, s49")
    a("v_add3_u32 %s, %s, %s, s48" % (vr(T0), vr(T0), vr(T0 + 1)))
    a("v_lshlrev_b32 %s, 10, %s" % (vr(T0), vr(T0)))
    a("v_lshl_add_u32 %s, %s, 4, %s" % (vr(T0), vr(VL), vr(T0)))
    a("v_and_b32 %s, 1, %s" % (vr(T0 + 1), vr(VW)))
    a("v_lshl_add_u32 %s, %s, 10, %s" % (vr(A0), vr(T0 + 1), vr(T0)))
    a("v_lshl_add_u32 %s, %s, 3, %s" % (vr(A1), vr(T0 + 1), vr(T0)))
    c0 = 2.0 * 0.7978845608028654 * LOG2E
    c1 = c0 * 0.044715
    a("v_mov_b32 v162, 0x%x" % f2u(-c1))
    a("v_mov_b32 v164, 0x%x" % f2u(-c0))
    a("s_mov_b32 s49, 0")
    for i in range(4):
        O = 168 + 8 * (i & 1)
        rs = vr(RS + 2 * i, 2)
        tt = [T0 + 4 * j for j in range(3)]
        for j in range(3):
            G, U = acc(j, i), acc(3 + j, i)
            for p in range(2):
                a(pk("mul", G + 2 * p, vr(G + 2 * p, 2), rs, bc=[1, 0]))
                a(pk("mul", U + 2 * p, vr(U + 2 * p, 2), rs, bc=[1, 0]))
        for j in range(3):
            G, t = acc(j, i), tt[j]
            for p in range(2):
                a(pk("mul", t + 2 * p, vr(G + 2 * p, 2), vr(G + 2 * p, 2)))
        for j in range(3):
            t = tt[j]
            for p in range(2):
                a(pk("fma", t + 2 * p, vr(t + 2 * p, 2), "v[162:163]", "v[164:165]", bc=[1, 0, 0]))
        for j in range(3):
            G, t = acc(j, i), tt[j]
            for p in range(2):
                a(pk("mul", t + 2 * p, vr(t + 2 * p, 2), vr(G + 2 * p, 2)))
        for j in range(3):
            for r in range(4):
                a("v_exp_f32 %s, %s" % (vr(tt[j] + r), vr(tt[j] + r)))
        for j in range(3):
            G, U = acc(j, i), acc(3 + j, i)
            for p in range(2):
                a(pk("mul", G + 2 * p, vr(G + 2 * p, 2), vr(U + 2 * p, 2)))
        for j in range(3):
            t = tt[j]
            for p in range(2):
                a(pk("add", t + 2 * p, vr(t + 2 * p, 2), "1.0", bc=[1, 0]))
        for j in range(3):
            for r in range(4):
                a("v_rcp_f32 %s, %s" % (vr(tt[j] + r), vr(tt[j] + r)))
        for j in range(3):
            G, t = acc(j, i), tt[j]
            for p in range(2):
                a(pk("mul", G + 2 * p, vr(G + 2 * p, 2), vr(t + 2 * p, 2)))
        for j in range(3):
            G = acc(j, i)
            a("v_cvt_pk_bf16_f32 %s, %s, %s" % (vr(O + 2 * j), vr(G), vr(G + 1)))
            a("v_cvt_pk_bf16_f32 %s, %s, %s" % (vr(O + 2 * j + 1), vr(G + 2), vr(G + 3)))
        a("buffer_store_dwordx4 %s, %s, s[40:43], s49 offen" % (vr(O, 4), vr(A0)))
        a("buffer_store_dwordx2 %s, %s, s[40:43], s49 offen offset:2048" % (vr(O + 4, 2), vr(A1)))
        if i < 3:
            a("s_add_u32 s49, s49, %d" % (48 * 1024))


def wphi_frags(a, R, AF, AD):
    wnmask = R["wnmask"]
    a("v_and_b32 %s, 3, %s" % (vr(T0), vr(VL)))
    a("v_bfe_u32 %s, %s, 2, 2" % (vr(T0 + 1), vr(VL)))
    a("v_lshrrev_b32 %s, 4, %s" % (vr(T0 + 2), vr(VL)))
    a("v_and_b32 %s, %d, %s" % (vr(T0 + 3), wnmask, vr(VW)))
    a("v_lshl_add_u32 %s, %s, 2, %s" % (vr(T0 + 3), vr(T0 + 3), vr(T0)))
    a("v_mul_u32_u24 %s, 800, %s" % (vr(T0 + 3), vr(T0 + 3)))
    a("v_add_u32 %s, %d, %s" % (vr(T0 + 3), LDS_WPHI, vr(T0 + 3)))
    a("v_mul_u32_u24 %s, 20, %s" % (vr(T0 + 4), vr(T0)))
    a("v_lshlrev_b32 %s, 2, %s" % (vr(T0 + 5), vr(T0 + 2)))
    a("v_sub_u32 %s, %s, %s" % (vr(T0 + 5), vr(T0 + 5), vr(T0 + 4)))
    a("v_mov_b32 %s, %d" % (vr(T0 + 8), LDS_ZERO))
    combos = [(0, 0), (0, 1), (1, 0), (1, 1), (2, 0)]
    for n, (c, hh) in enumerate(combos):
        a("v_add_u32 %s, %d, %s" % (vr(T0 + 6), 32 * c + 16 * hh, vr(T0 + 5)))
        a("v_cmp_gt_u32 vcc, 20, %s" % vr(T0 + 6))
        a("v_add_u32 %s, %s, %s" % (vr(T0 + 6), vr(T0 + 6), vr(T0 + 1)))
        a("v_mul_u32_u24 %s, 40, %s" % (vr(T0 + 6), vr(T0 + 6)))
        a("v_add_u32 %s, %s, %s" % (vr(T0 + 6), vr(T0 + 6), vr(T0 + 3)))
        a("v_cndmask_b32 %s, %s, %s, vcc" % (vr(AD + n), vr(T0 + 8), vr(T0 + 6)))
    for tp in range(5):
        for n, (c, hh) in enumerate(combos):
            a("ds_read_b64_tr_b16 %s, %s offset:%d" % (vr(AF + (tp * 3 + c) * 4 + 2 * hh, 2), vr(AD + n), tp * 8))
        a("v_mov_b32 %s, 0" % vr(AF + (tp * 3 + 2) * 4 + 2))
        a("v_mov_b32 %s, 0" % vr(AF + (tp * 3 + 2) * 4 + 3))


def phi_tile(a, R, i, AF, BQ, P, E, TT):
    acc = R["acc"]
    rs = vr(RS + 2 * i, 2)
    p = lambda r: P[r >> 2] + (r & 3)
    e = lambda r: E[r >> 2] + (r & 3)
    for t in range(5):
        A = acc(t, i)
        for q in range(2):
            a(pk("mul", A + 2 * q, vr(A + 2 * q, 2), rs, bc=[1, 0]))
        bq = BQ[t >> 1] + 2 * (t & 1)
        a("v_cvt_pk_bf16_f32 %s, %s, %s" % (vr(bq), vr(A), vr(A + 1)))
        a("v_cvt_pk_bf16_f32 %s, %s, %s" % (vr(bq + 1), vr(A + 2), vr(A + 3)))
    a("v_mov_b32 %s, 0" % vr(BQ[2] + 2))
    a("v_mov_b32 %s, 0" % vr(BQ[2] + 3))
    for c in range(3):
        for tp in range(5):
            mfma(a, P[tp], AF + (tp * 3 + c) * 4, BQ[c], None if c == 0 else P[tp])
    mx, mn = TT, TT + 2
    a("v_max3_f32 %s, %s, %s, %s" % (vr(mx), vr(p(0)), vr(p(1)), vr(p(2))))
    a("v_min3_f32 %s, %s, %s, %s" % (vr(mn), vr(p(0)), vr(p(1)), vr(p(2))))
    for r in range(3, 19, 2):
        a("v_max3_f32 %s, %s, %s, %s" % (vr(mx), vr(mx), vr(p(r)), vr(p(r + 1))))
        a("v_min3_f32 %s, %s, %s, %s" % (vr(mn), vr(mn), vr(p(r)), vr(p(r + 1))))
    a("v_max_f32 %s, %s, %s" % (vr(mx), vr(mx), vr(p(19))))
    a("v_min_f32 %s, %s, %s" % (vr(mn), vr(mn), vr(p(19))))
    a("v_mov_b32 %s, 0x%x" % (vr(TT + 4), f2u(LOG2E)))
    a("v_mul_f32 %s, %s, %s" % (vr(mx), vr(mx), vr(TT + 4)))
    a("v_mul_f32 %s, %s, %s" % (vr(mn), vr(mn), vr(TT + 4)))
    for r in range(0, 20, 2):
        a(pk("fma", e(r), vr(p(r), 2), vr(TT + 4, 2), vr(mx, 2), bc=[1, 0, 0]) + " neg_lo:[0,0,1] neg_hi:[0,0,1]")
        a(pk("fma", p(r), vr(p(r), 2), vr(TT + 4, 2), vr(mn, 2), bc=[1, 0, 0]) + " neg_lo:[1,0,0] neg_hi:[1,0,0]")
    for r in range(20):
        a("v_exp_f32 %s, %s" % (vr(e(r)), vr(e(r))))
        a("v_exp_f32 %s, %s" % (vr(p(r)), vr(p(r))))
    s1, s2 = TT + 6, TT + 8
    a(pk("add", s1, vr(e(0), 2), vr(e(2), 2)))
    a(pk("add", s2, vr(p(0), 2), vr(p(2), 2)))
    for r in range(4, 20, 2):
        a(pk("add", s1, vr(s1, 2), vr(e(r), 2)))
        a(pk("add", s2, vr(s2, 2), vr(p(r), 2)))
    a("v_add_f32 %s, %s, %s" % (vr(s1), vr(s1), vr(s1 + 1)))
    a("v_add_f32 %s, %s, %s" % (vr(s2), vr(s2), vr(s2 + 1)))
    a("v_rcp_f32 %s, %s" % (vr(s1), vr(s1)))
    a("v_rcp_f32 %s, %s" % (vr(s2), vr(s2)))
    for r in range(0, 20, 2):
        a(pk("mul", e(r), vr(e(r), 2), vr(s1, 2), bc=[1, 0]))
        a(pk("mul", p(r), vr(p(r), 2), vr(s2, 2), bc=[1, 0]))
    for r in range(10):
        a("v_cvt_pk_bf16_f32 %s, %s, %s" % (vr(e(r)), vr(e(2 * r)), vr(e(2 * r + 1))))
    for r in range(10):
        a("v_cvt_pk_bf16_f32 %s, %s, %s" % (vr(e(10 + r)), vr(p(2 * r)), vr(p(2 * r + 1))))


def phi_pair(a, R, i0, AF):
    acc = R["acc"]
    PA = [164 + 4 * k for k in range(5)]
    EA = [184 + 4 * k for k in range(5)]
    PB = [acc(t, i0) for t in range(5)]
    EB = [acc(t, i0 + 1) for t in range(5)]
    ra, rb = Rec(), Rec()
    phi_tile(ra, R, i0, AF, [80, 84, 88], PA, EA, T0)
    phi_tile(rb, R, i0 + 1, AF, [92, 156, 238], PB, EB, T0 + 10)
    head = 22
    for x, y in zip(ra.l[:head], rb.l[:head]):
        a(x)
        a(y)
    ra.l, rb.l = ra.l[head:], rb.l[head:]
    merge(a, ra, rb)
    return EA, EB


def epi_q(a, R):
    a.comment("Q epilogue")
    AF = 96
    AD = 156
    BQ = 164
    BQ = 80
    P, E = 164, 184
    make_srd(a, 40, 24, PQF_BYTES, WS_PQF)
    wphi_frags(a, R, AF, AD)
    A0 = 161
    a("v_and_b32 %s, 3, %s" % (vr(T0), vr(VW)))
    a("v_lshlrev_b32 %s, 4, %s" % (vr(T0), vr(T0)))
    a("s_lshl_b32 s48, s51, 6")
    a("s_add_u32 s48, s48, s52")
    a("v_add_u32 %s, s48, %s" % (vr(T0), vr(T0)))
    a("v_mul_u32_u24 %s, 5120, %s" % (vr(T0), vr(T0)))
    a("v_lshl_add_u32 %s, %s, 4, %s" % (vr(A0), vr(VL), vr(T0)))
    a("s_mov_b32 s49, %d" % (8 * 5120))
    a("s_movk_i32 s50, 4096")
    for i0 in (0,):
        for qq in phi_pair(a, R, i0, AF):
            for c in range(5):
                if c < 4:
                    a("buffer_store_dwordx4 %s, %s, s[40:43], 0 offen offset:%d" % (vr(qq[c], 4), vr(A0), 1024 * c))
                else:
                    a("buffer_store_dwordx4 %s, %s, s[40:43], s50 offen" % (vr(qq[c], 4), vr(A0)))
            a("v_add_u32 %s, s49, %s" % (vr(A0), vr(A0)))


def epi_kv(a, R):
    acc = R["acc"]
    L = R["L"]
    AF = 96
    AD = 156
    ONE, RSF, RR = 164, 168, 176
    r1 = Rec()
    t1 = T0 + 10
    r1("v_cmp_gt_u32 vcc, 16, %s" % vr(VL))
    r1("v_mov_b32 %s, 0x3f803f80" % vr(t1))
    r1("v_mov_b32 %s, 0x3f80" % vr(t1 + 1))
    r1("v_cndmask_b32 %s, 0, %s, vcc" % (vr(ONE), vr(t1)))
    r1("v_cndmask_b32 %s, 0, %s, vcc" % (vr(ONE + 1), vr(t1 + 1)))
    r1("v_mov_b32 %s, 0" % vr(ONE + 2))
    r1("v_mov_b32 %s, 0" % vr(ONE + 3))
    for i in range(2):
        r1("v_mov_b32 %s, %s" % (vr(t1 + 4), vr(RS + 2 * i)))
        split3(r1, t1 + 4, RSF + 4 * i, t1, t1 + 1, t1 + 2)
    for x in r1.l:
        a(x)
    for i in range(2):
        mfma(a, RR + 4 * i, RSF + 4 * i, ONE, None)
    wphi_frags(a, R, AF, AD)
    for i in range(2):
        for j in range(5):
            A = acc(5 + j, i)
            for p in range(2):
                a(pk("mul", A + 2 * p, vr(A + 2 * p, 2), vr(RR + 4 * i + 2 * p, 2)))
    for j in range(5):
        A0_, A1_ = acc(5 + j, 0), acc(5 + j, 1)
        a("v_cvt_pk_bf16_f32 %s, %s, %s" % (vr(A0_), vr(A0_), vr(A0_ + 1)))
        a("v_cvt_pk_bf16_f32 %s, %s, %s" % (vr(A0_ + 1), vr(A0_ + 2), vr(A0_ + 3)))
        a("v_cvt_pk_bf16_f32 %s, %s, %s" % (vr(A0_ + 2), vr(A1_), vr(A1_ + 1)))
        a("v_cvt_pk_bf16_f32 %s, %s, %s" % (vr(A0_ + 3), vr(A1_ + 2), vr(A1_ + 3)))
    q0, q1 = phi_pair(a, R, 0, AF)
    SEL = 144
    ONES = 152
    a("v_and_b32 %s, 15, %s" % (vr(T0), vr(VL)))
    a("v_lshrrev_b32 %s, 4, %s" % (vr(T0 + 1), vr(VL)))
    a("v_lshrrev_b32 %s, 3, %s" % (vr(T0 + 2), vr(T0)))
    a("v_and_b32 %s, 7, %s" % (vr(T0 + 3), vr(T0)))
    a("v_and_b32 %s, 1, %s" % (vr(T0 + 4), vr(T0 + 3)))
    a("v_lshlrev_b32 %s, 4, %s" % (vr(T0 + 4), vr(T0 + 4)))
    a("v_mov_b32 %s, 0x3f80" % vr(T0 + 5))
    a("v_lshlrev_b32 %s, %s, %s" % (vr(T0 + 5), vr(T0 + 4), vr(T0 + 5)))
    a("v_lshrrev_b32 %s, 1, %s" % (vr(T0 + 3), vr(T0 + 3)))
    for aa in range(2):
        a("v_add_u32 %s, %d, %s" % (vr(T0 + 6), 2 * aa, vr(T0 + 2)))
        a("v_cmp_eq_u32 s[54:55], %s, %s" % (vr(T0 + 6), vr(T0 + 1)))
        a("v_cndmask_b32 %s, 0, %s, s[54:55]" % (vr(T0 + 7), vr(T0 + 5)))
        for r in range(4):
            a("v_cmp_eq_u32 vcc, %d, %s" % (r, vr(T0 + 3)))
            a("v_cndmask_b32 %s, 0, %s, vcc" % (vr(SEL + 4 * aa + r), vr(T0 + 7)))
    for r in range(4):
        a("v_mov_b32 %s, 0x3f803f80" % vr(ONES + r))
    A2 = 104
    D = 156
    combos = [(c, aa) for c in range(5) for aa in range(2)]
    WA = AF
    r2 = Rec()
    r2("v_mul_u32_u24 %s, 13440, %s" % (vr(T0 + 8), vr(VW)))
    r2("v_and_b32 %s, 1, %s" % (vr(T0 + 9), vr(T0 + 1)))
    r2("v_lshl_add_u32 %s, %s, 4, %s" % (vr(T0 + 8), vr(T0 + 9), vr(T0 + 8)))
    r2("v_lshrrev_b32 %s, 1, %s" % (vr(T0 + 9), vr(T0 + 1)))
    r2("v_mov_b32 %s, %d" % (vr(T0 + 10), LDS_DUMMY))
    pairs = []
    n = 0
    for aa in range(2):
        r2("v_add_u32 %s, %d, %s" % (vr(T0 + 11), 2 * aa, vr(T0 + 9)))
        r2("v_mul_u32_u24 %s, 3360, %s" % (vr(T0 + 12), vr(T0 + 11)))
        r2("v_add_u32 %s, %s, %s" % (vr(T0 + 12), vr(T0 + 12), vr(T0 + 8)))
        r2("v_mul_u32_u24 %s, 20, %s" % (vr(T0 + 13), vr(T0 + 11)))
        for Tt in ((0, 1, 2) if aa == 0 else (2, 3, 4)):
            r2("v_add_u32 %s, %d, %s" % (vr(T0 + 14), 16 * Tt, vr(T0)))
            r2("v_sub_u32 %s, %s, %s" % (vr(T0 + 14), vr(T0 + 14), vr(T0 + 13)))
            r2("v_cmp_gt_u32 vcc, 20, %s" % vr(T0 + 14))
            r2("v_mul_u32_u24 %s, 160, %s" % (vr(T0 + 14), vr(T0 + 14)))
            r2("v_add_u32 %s, %s, %s" % (vr(T0 + 14), vr(T0 + 14), vr(T0 + 12)))
            r2("v_cndmask_b32 %s, %s, %s, vcc" % (vr(WA + n), vr(T0 + 10), vr(T0 + 14)))
            pairs.append((aa, Tt, WA + n))
            n += 1
        r2("v_cmp_eq_u32 vcc, 0, %s" % vr(T0))
        r2("v_add_u32 %s, 3200, %s" % (vr(T0 + 14), vr(T0 + 12)))
        r2("v_cndmask_b32 %s, %s, %s, vcc" % (vr(WA + 6 + aa), vr(T0 + 10), vr(T0 + 14)))
    r3 = Rec()
    for n_ in range(12):
        if n_ < 10:
            c, aa = combos[n_]
            d = D + 8 * (n_ % 3)
            mfma(r3, d, q0[c], SEL + 4 * aa, None)
            mfma(r3, d + 4, q1[c], SEL + 4 * aa, None)
        if n_ >= 2:
            m_ = n_ - 2
            d = D + 8 * (m_ % 3)
            x = A2 + 4 * m_
            for r in range(4):
                r3("v_cvt_pk_bf16_f32 %s, %s, %s" % (vr(x + r), vr(d + 2 * r), vr(d + 2 * r + 1)))
    merge(a, r3, r2)
    a("s_waitcnt lgkmcnt(0)")
    a("s_barrier")
    stamp(a, 3)
    OUTS = [156, 230]
    for n_ in range(11):
        if n_ < 10:
            c, aa = combos[n_]
            o = OUTS[n_ & 1]
            x = A2 + 4 * n_
            ps = [p for p in pairs if p[0] == aa]
            for q, (_, Tt, ad) in enumerate(ps):
                mfma(a, o + 4 * q, x, acc(5 + Tt, 0), None)
            mfma(a, o + 12, x, ONES, None)
        if n_ >= 1:
            (c1, a1) = combos[n_ - 1]
            o1 = OUTS[(n_ - 1) & 1]
            ps1 = [p for p in pairs if p[0] == a1]
            for q, (_, Tt, ad) in enumerate(ps1):
                a("ds_write_b128 %s, %s offset:%d" % (vr(ad), vr(o1 + 4 * q, 4), 32 * c1))
            a("ds_write_b128 %s, %s offset:%d" % (vr(WA + 6 + a1), vr(o1 + 12, 4), 32 * c1))
    a("s_waitcnt lgkmcnt(0)")
    a("s_barrier")
    stamp(a, 4)
    make_srd(a, 40, 24, KVA_BYTES, WS_KVA)
    a("s_mul_i32 s48, s52, %d" % (4 * 3360))
    a("v_lshlrev_b32 %s, 2, %s" % (vr(T0), vr(VTID)))
    for q in range(14):
        b = 32 + 4 * q
        for wm in range(4):
            a("ds_read_b32 %s, %s offset:%d" % (vr(b + wm), vr(T0), wm * 13440 + q * 1024))
    a("v_mov_b32 %s, 0x7fffff00" % vr(T0 + 3))
    a("v_cmp_gt_u32 vcc, %d, %s" % (3360 - 13 * 256, vr(VTID)))
    a("v_cndmask_b32 %s, %s, %s, vcc" % (vr(T0 + 2), vr(T0 + 3), vr(T0)))
    for q in range(14):
        b = 32 + 4 * q
        a("v_add_f32 %s, %s, %s" % (vr(b), vr(b), vr(b + 1)))
        a("v_add_f32 %s, %s, %s" % (vr(b + 2), vr(b + 2), vr(b + 3)))
        a("v_add_f32 %s, %s, %s" % (vr(b), vr(b), vr(b + 2)))
        a("buffer_atomic_add_f32 %s, %s, s[40:43], s48 offen offset:%d sc1" % (vr(b), vr(T0 + 2 if q == 13 else T0), (q & 3) * 1024))
        if (q & 3) == 3:
            a("s_add_u32 s48, s48, 4096")


def repack_job(a, warm=False):
    a.comment("==== repack job")
    W = "w" if warm else ""
    a("s_cmp_ge_u32 s47, 2")
    a("s_cbranch_scc1 Lrj%s_done" % W)
    a("s_lshl_b32 s48, s47, 7")
    a("s_add_u32 s64, s2, s48")
    a("s_cmp_ge_u32 s64, 192")
    a("s_cbranch_scc1 Lrj%s_done" % W)
    a("s_and_b32 s65, s64, 7")
    a("s_lshr_b32 s64, s64, 3")
    a("s_lshl_b32 s66, s47, 14")
    make_srd(a, 84, 24, W2F_BYTES, WS_W2F)
    make_srd(a, 88, 18, 1536 * 1280)
    a("s_mul_i32 s67, s64, %d" % (96 * 1280))
    a("s_mul_i32 s68, s64, %d" % (3 * 5120))
    a("s_cmp_lt_u32 s64, 16")
    a("s_cbranch_scc1 Lrj%s_h" % W)
    make_srd(a, 88, 10, 640 * 1280)
    a("s_sub_u32 s49, s64, 16")
    a("s_mul_i32 s67, s49, %d" % (80 * 1280))
    a.label("Lrj%s_h" % W)
    a.hist = []
    a("s_mul_i32 s48, s65, 160")
    a("s_add_u32 s67, s67, s48")
    a("s_mov_b32 s49, 0x1999999a")
    for q in range(15):
        a("v_add_u32 v1, %d, %s" % (64 * q, vr(VL)))
        a("v_mul_hi_u32 v2, v1, s49")
        a("v_mul_u32_u24 v3, 10, v2")
        a("v_sub_u32 v3, v1, v3")
        a("v_mul_u32_u24 v2, 1280, v2")
        a("v_lshl_add_u32 v2, v3, 4, v2")
        if warm:
            a("s_mov_b32 m0, %d" % (LDS_WPHI + 4096))
        else:
            a("s_add_u32 m0, s66, %d" % (q * 1024))
        a("buffer_load_dwordx4 v2, s[88:91], s67 offen lds")
    if warm:
        a.label("Lrjw_done")
        a.hist = []
        return
    a("v_and_b32 v3, 15, %s" % vr(VL))
    a("v_lshrrev_b32 v4, 4, %s" % vr(VL))
    a("v_and_b32 v6, 3, v3")
    a("v_lshlrev_b32 v6, 3, v6")
    a("v_add_u32 v6, s66, v6")
    a("v_lshrrev_b32 v7, 2, v3")
    a("s_mul_i32 s48, s65, %d" % (72 * 5120))
    a("s_add_u32 s48, s48, s68")
    a("v_lshlrev_b32 v8, 4, %s" % vr(VL))
    a("s_cmp_lt_u32 s64, 16")
    a("s_cbranch_scc0 Lrj%s_o" % W)
    a("v_lshl_add_u32 v9, v4, 2, v7")
    a("v_mul_u32_u24 v9, 160, v9")
    a("v_add_u32 v9, v9, v6")
    a("s_waitcnt vmcnt(0)")
    tiles = [(0, 16), (48, 64), (32, 80)]
    for cc in range(3):
        for t in range(5):
            d = 16 + 4 * (cc * 5 + t)
            for hh in range(2):
                a("ds_read_b64_tr_b16 %s, v9 offset:%d" % (vr(d + 2 * hh, 2), t * 32 + tiles[cc][hh] * 160))
    a("s_branch Lrj%s_st" % W)
    a.label("Lrj%s_o" % W)
    a.hist = []
    a.lg = []
    a("v_mul_u32_u24 v9, 20, v4")
    a("v_add_u32 v9, v9, v7")
    a("v_mul_u32_u24 v9, 160, v9")
    a("v_add_u32 v9, v9, v6")
    a("s_waitcnt vmcnt(0)")
    for c in range(3):
        for t in range(5):
            d = 16 + 4 * (c * 5 + t)
            a("ds_read_b64_tr_b16 %s, v9 offset:%d" % (vr(d, 2), t * 32 + 8 * c * 160))
            if c < 2:
                a("ds_read_b64_tr_b16 %s, v9 offset:%d" % (vr(d + 2, 2), t * 32 + (8 * c + 4) * 160))
            else:
                a("v_mov_b32 %s, 0" % vr(d + 2))
                a("v_mov_b32 %s, 0" % vr(d + 3))
    a.label("Lrj%s_st" % W)
    a.hist = []
    a("s_waitcnt lgkmcnt(0)")
    a.lg = []
    for n in range(15):
        d = 16 + 4 * n
        a("buffer_store_dwordx4 %s, v8, s[84:87], s48 offen offset:%d" % (vr(d, 4), (n & 3) * 1024))
        if (n & 3) == 3:
            a("s_add_u32 s48, s48, 4096")
    a.label("Lrj%s_done" % W)
    a.hist = []


def repack(a):
    a.comment("==== repack")
    a("v_and_b32 v1, 63, v0")
    a("v_lshrrev_b32 v2, 6, v0")
    a("v_readfirstlane_b32 s47, v2")
    a("s_sub_u32 s51, s2, 224")
    make_srd(a, 32, 24, W2F_BYTES, WS_W2F)
    a("v_and_b32 v3, 15, v1")
    a("v_lshrrev_b32 v4, 4, v1")
    a("v_lshlrev_b32 v5, 4, v0")
    a("s_lshl_b32 s46, s47, 10")
    a("v_mul_u32_u24 v6, 160, v2")
    a("v_and_b32 v7, 3, v3")
    a("v_lshl_add_u32 v6, v7, 3, v6")
    a("v_lshrrev_b32 v7, 2, v3")
    a("v_mul_u32_u24 v8, %d, v2" % (72 * 5120))
    a("v_lshl_add_u32 v8, v1, 4, v8")
    a("s_cmp_ge_u32 s51, 24")
    a("s_cbranch_scc1 Lrp_o")
    a("s_cmp_ge_u32 s51, 16")
    a("s_cbranch_scc1 Lk1_exit")
    make_srd(a, 28, 18, 1536 * 1280)
    a("s_mul_i32 s48, s51, %d" % (96 * 1280))
    for q in range(15):
        a("s_add_u32 m0, s46, %d" % (q * 8192))
        a("buffer_load_dwordx4 v5, s[28:31], s48 offen lds")
        a("s_add_u32 s48, s48, 8192")
    a("v_lshl_add_u32 v9, v4, 2, v7")
    a("v_mul_u32_u24 v9, 1280, v9")
    a("v_add_u32 v9, v9, v6")
    a("v_add_u32 v10, %d, v9" % (48 * 1280))
    a("s_waitcnt vmcnt(0)")
    a("s_barrier")
    a("s_mul_i32 s48, s51, %d" % (3 * 5120))
    tiles = [(0, 16), (48, 64), (32, 80)]
    for cc in range(3):
        for t in range(5):
            d = 16 + 4 * (cc * 5 + t)
            for hh in range(2):
                row = tiles[cc][hh]
                a("ds_read_b64_tr_b16 %s, %s offset:%d" % (vr(d + 2 * hh, 2), "v10" if row >= 48 else "v9", t * 32 + (row % 48) * 1280))
    for n in range(15):
        d = 16 + 4 * n
        a("buffer_store_dwordx4 %s, v8, s[32:35], s48 offen offset:%d" % (vr(d, 4), (n & 3) * 1024))
        if (n & 3) == 3:
            a("s_add_u32 s48, s48, 4096")
    a("s_endpgm")
    a.label("Lrp_o")
    a.hist = []
    make_srd(a, 28, 10, 640 * 1280)
    a("s_sub_u32 s51, s51, 24")
    a("s_mul_i32 s48, s51, %d" % (80 * 1280))
    for q in range(13):
        a("s_add_u32 m0, s46, %d" % (q * 8192))
        a("buffer_load_dwordx4 v5, s[28:31], s48 offen lds")
        a("s_add_u32 s48, s48, 8192")
    a("v_mul_u32_u24 v9, 20, v4")
    a("v_add_u32 v9, v9, v7")
    a("v_mul_u32_u24 v9, 1280, v9")
    a("v_add_u32 v9, v9, v6")
    a("s_waitcnt vmcnt(0)")
    a("s_barrier")
    for c in range(3):
        for t in range(5):
            d = 16 + 4 * (c * 5 + t)
            a("ds_read_b64_tr_b16 %s, v9 offset:%d" % (vr(d, 2), t * 32 + 8 * c * 1280))
            if c < 2:
                a("ds_read_b64_tr_b16 %s, v9 offset:%d" % (vr(d + 2, 2), t * 32 + (8 * c + 4) * 1280))
            else:
                a("v_mov_b32 %s, 0" % vr(d + 2))
                a("v_mov_b32 %s, 0" % vr(d + 3))
    a("s_mul_i32 s48, s51, %d" % (3 * 5120))
    a("s_add_u32 s48, s48, %d" % (48 * 5120))
    for n in range(15):
        d = 16 + 4 * n
        a("buffer_store_dwordx4 %s, v8, s[32:35], s48 offen offset:%d" % (vr(d, 4), (n & 3) * 1024))
        if (n & 3) == 3:
            a("s_add_u32 s48, s48, 4096")
    a("s_endpgm")


def gen_k1(a):
    a.label("k1_kernel")
    load_kernargs(a)
    a("s_cmp_ge_u32 s2, 256")
    a("s_cbranch_scc1 Lk1_exit")
    a("s_waitcnt lgkmcnt(0)")
    a("s_cmp_ge_u32 s2, 128")
    a("s_cbranch_scc1 Lk1_qkv")
    a("s_lshr_b32 s51, s2, 3")
    a("s_and_b32 s52, s2, 7")
    k1_path(a, "GU")
    a.label("Lk1_qkv")
    a.hist = []
    a("s_sub_u32 s48, s2, 128")
    a("s_lshr_b32 s51, s48, 3")
    a("s_and_b32 s52, s48, 7")
    a("v_readfirstlane_b32 s47, v0")
    a("s_cmp_ge_u32 s47, 256")
    a("s_cbranch_scc1 Lk1_q")
    k1_path(a, "KV")
    a.label("Lk1_q")
    a.hist = []
    k1_path(a, "Q")
    a.label("Lk1_exit")
    a("s_endpgm")


K2_LDS = 81920
ND = 4


def gen_k2(a):
    a.label("k2_kernel")
    load_kernargs(a)
    a("s_cmp_ge_u32 s2, 256")
    a("s_cbranch_scc1 Lk2_exit")
    a("s_waitcnt lgkmcnt(0)")
    a("s_and_b32 s51, s2, 31")
    a("s_lshr_b32 s52, s2, 5")
    make_srd(a, 28, 24, HF_BYTES, WS_HF)
    make_srd(a, 32, 24, OF_BYTES, WS_OF)
    make_srd(a, 36, 24, W2F_BYTES, WS_W2F)
    make_srd(a, 40, 24, PQF_BYTES, WS_PQF)
    make_srd(a, 56, 24, KVA_BYTES, WS_KVA)
    make_srd(a, 60, 24, 4096, WS_FLG)
    ACC2 = 0
    FR = 80
    VA, VO, VWt = 224, 225, 226
    L2, W2, TID = 227, 228, 229
    T = 230
    a("v_mov_b32 %s, v0" % vr(TID))
    a("v_and_b32 %s, 63, v0" % vr(L2))
    a("v_lshrrev_b32 %s, 6, v0" % vr(W2))
    a("v_readfirstlane_b32 s47, %s" % vr(W2))
    stamp(a, 0)
    a("s_mul_i32 s48, s51, %d" % (4 * 48 * 1024))
    if "sameA" in FL:
        a("s_mov_b32 s48, 0")
    a("v_lshlrev_b32 %s, 4, %s" % (vr(T), vr(L2)))
    a("v_lshl_add_u32 %s, %s, 10, %s" % (vr(T + 1), vr(W2), vr(T)))
    a("v_add_u32 %s, s48, %s" % (vr(VA), vr(T + 1)))
    a("s_mul_i32 s48, s51, %d" % (4 * 24 * 1024))
    a("v_add_u32 %s, s48, %s" % (vr(VO), vr(T + 1)))
    a("s_mul_i32 s48, s52, %d" % (72 * 5120))
    if "sameW" in FL:
        a("s_mov_b32 s48, 0")
    a("v_mul_u32_u24 %s, 5120, %s" % (vr(T + 2), vr(W2)))
    a("v_add3_u32 %s, %s, %s, s48" % (vr(VWt), vr(T + 2), vr(T)))

    NSTEP = 18

    a("s_mul_i32 s53, s51, 0x5556")
    a("s_lshr_b32 s53, s53, 18")
    a("s_mul_i32 s53, s53, 12")
    a("s_sub_u32 s53, s51, s53")
    if "norot" in FL:
        a("s_mov_b32 s53, 0")

    def loads(s):
        b = FR + (s % ND) * 36
        if s == 12:
            a("s_lshr_b32 s53, s53, 1")
        a("s_mul_i32 s48, s53, 20480")
        if s >= 12:
            a("s_add_u32 s48, s48, %d" % (12 * 20480))
        a("s_add_u32 s49, s48, 4096")
        for t in range(5):
            a("buffer_load_dwordx4 %s, %s, s[36:39], s48 offen offset:%d" % (vr(b + 4 * t, 4), vr(VWt), t * 1024) if t < 4 else
              "buffer_load_dwordx4 %s, %s, s[36:39], s49 offen" % (vr(b + 4 * t, 4), vr(VWt)))
        a("s_lshl_b32 s48, s53, 12")
        for i in range(4):
            if s < 12:
                a("buffer_load_dwordx4 %s, %s, s[28:31], s48 offen" % (vr(b + 20 + 4 * i, 4), vr(VA)))
                a("s_add_u32 s48, s48, %d" % (48 * 1024))
            else:
                a("buffer_load_dwordx4 %s, %s, s[32:35], s48 offen sc1" % (vr(b + 20 + 4 * i, 4), vr(VO)))
                a("s_add_u32 s48, s48, %d" % (24 * 1024))
        a("s_add_u32 s53, s53, 1")
        a("s_cmp_ge_u32 s53, %d" % (12 if s < 12 else 6))
        a("s_cselect_b32 s53, 0, s53")

    a.auto = True
    a("s_mul_i32 s48, s52, %d" % (4 * 3360))
    a("v_lshlrev_b32 %s, 4, %s" % (vr(T + 3), vr(TID)))
    a("v_add_u32 %s, s48, %s" % (vr(T + 4), vr(T + 3)))
    a("v_mov_b32 %s, 0x7fffff00" % vr(T + 5))
    a("v_cmp_gt_u32 vcc, %d, %s" % (840 - 768, vr(TID)))
    a("v_cndmask_b32 %s, %s, %s, vcc" % (vr(T + 5), vr(T + 5), vr(T + 4)))
    for q in range(3):
        a("buffer_load_dwordx4 %s, %s, s[56:59], 0 offen offset:%d" % (vr(4 * q, 4), vr(T + 4), 0) if q == 0 else
          "buffer_load_dwordx4 %s, %s, s[56:59], s49 offen" % (vr(4 * q, 4), vr(T + 4)))
        a("s_mov_b32 s49, %d" % (4096 * (q + 1)))
    a("buffer_load_dwordx4 v[12:15], %s, s[56:59], s49 offen" % vr(T + 5))
    a("s_lshl_b32 s48, s51, 5")
    a("s_add_u32 s48, s48, s52")
    a("s_mul_i32 s48, s48, 5120")
    a("v_mul_u32_u24 %s, %d, %s" % (vr(T + 6), 8 * 5120, vr(W2)))
    a("v_add3_u32 %s, %s, %s, s48" % (vr(T + 6), vr(T + 6), vr(T)))
    a("s_mov_b32 s49, 4096")
    for c in range(5):
        if c < 4:
            a("buffer_load_dwordx4 %s, %s, s[40:43], 0 offen offset:%d" % (vr(16 + 4 * c, 4), vr(T + 6), c * 1024))
        else:
            a("buffer_load_dwordx4 %s, %s, s[40:43], s49 offen" % (vr(16 + 4 * c, 4), vr(T + 6)))
    n_before = len(a.vm)
    for s in range(ND):
        loads(s)
    a("v_lshlrev_b32 %s, 3, %s" % (vr(T + 3), vr(TID)))
    for q in range(4):
        a("v_cvt_pk_bf16_f32 %s, %s, %s" % (vr(4 * q), vr(4 * q), vr(4 * q + 1)))
        a("v_cvt_pk_bf16_f32 %s, %s, %s" % (vr(4 * q + 1), vr(4 * q + 2), vr(4 * q + 3)))
        a("ds_write_b64 %s, %s offset:%d" % (vr(T + 3), vr(4 * q, 2), q * 2048))
    a("s_waitcnt lgkmcnt(0)")
    a("s_barrier")
    stamp(a, 1)
    a("v_bfe_u32 %s, %s, 2, 2" % (vr(T + 3), vr(L2)))
    a("v_and_b32 %s, 3, %s" % (vr(T + 4), vr(L2)))
    a("v_lshrrev_b32 %s, 4, %s" % (vr(T + 5), vr(L2)))
    a("v_mul_u32_u24 %s, 1680, %s" % (vr(T + 7), vr(T + 3)))
    a("v_mul_u32_u24 %s, 80, %s" % (vr(T + 4), vr(T + 4)))
    a("v_add_u32 %s, %s, %s" % (vr(T + 4), vr(T + 4), vr(T + 7)))
    a("v_add_u32 %s, 1600, %s" % (vr(T + 7), vr(T + 7)))
    a("v_cmp_eq_u32 vcc, %s, %s" % (vr(T + 3), vr(T + 5)))
    a("v_mov_b32 %s, 6720" % vr(T + 8))
    a("v_cndmask_b32 %s, %s, %s, vcc" % (vr(T + 7), vr(T + 8), vr(T + 7)))
    for tp in range(5):
        a("v_add_u32 %s, %d, %s" % (vr(T + 9), 320 * tp, vr(T + 4)))
        a("v_cndmask_b32 %s, %s, %s, vcc" % (vr(T + 10 + tp), vr(T + 8), vr(T + 9)))
    NUM = 36
    DEN = 56
    AFr = 60
    for tp in range(6):
        ad = T + 10 + tp if tp < 5 else T + 7
        dst = NUM + 4 * tp if tp < 5 else DEN
        for c in range(5):
            a("ds_read_b128 %s, %s offset:%d" % (vr(AFr + 4 * c, 4), vr(ad), c * 16))
        for c in range(5):
            mfma(a, dst, AFr + 4 * c, 16 + 4 * c, None if c == 0 else dst)
    a("v_cvt_pk_bf16_f32 %s, %s, %s" % (vr(T + 3), vr(DEN), vr(DEN)))
    a("v_lshlrev_b32 %s, 16, %s" % (vr(T + 3), vr(T + 3)))
    a("v_add_f32 %s, 0x%x, %s" % (vr(T + 3), f2u(1e-6), vr(T + 3)))
    a("v_cvt_pk_bf16_f32 %s, %s, %s" % (vr(T + 3), vr(T + 3), vr(T + 3)))
    a("v_lshlrev_b32 %s, 16, %s" % (vr(T + 3), vr(T + 3)))
    a("v_rcp_f32 %s, %s" % (vr(T + 4), vr(T + 3)))
    for r in range(0, 20, 2):
        rnd2(a, NUM + r, NUM + r + 1, T + 5)
    for r in range(0, 20, 2):
        a(pk("mul", NUM + r, vr(NUM + r, 2), vr(T + 4, 2), bc=[1, 0]))
    for r in range(10):
        a("v_cvt_pk_bf16_f32 %s, %s, %s" % (vr(60 + r), vr(NUM + 2 * r), vr(NUM + 2 * r + 1)))
    a("v_mov_b32 v70, 0")
    a("v_mov_b32 v71, 0")
    a("s_lshl_b32 s48, s51, 5")
    a("s_add_u32 s48, s48, s52")
    a("s_mul_i32 s48, s48, 3072")
    a("v_mul_u32_u24 %s, %d, %s" % (vr(T + 6), 8 * 3072, vr(W2)))
    a("v_add3_u32 %s, %s, %s, s48" % (vr(T + 6), vr(T + 6), vr(T)))
    for c in range(3):
        a("buffer_store_dwordx4 %s, %s, s[32:35], 0 offen offset:%d sc1" % (vr(60 + 4 * c, 4), vr(T + 6), c * 1024))
    a("s_waitcnt vmcnt(0)")
    a("v_mov_b32 %s, 1" % vr(T + 3))
    a("s_lshl_b32 s48, s51, 7")
    a("s_lshl_b32 s49, s52, 4")
    a("s_add_u32 s48, s48, s49")
    a("s_lshl_b32 s49, s47, 2")
    a("s_add_u32 s48, s48, s49")
    a("v_mov_b32 %s, s48" % vr(T + 4))
    a("s_mov_b64 exec, 1")
    a("buffer_store_dword %s, %s, s[60:63], 0 offen sc1" % (vr(T + 3), vr(T + 4)))
    a("s_mov_b64 exec, -1")
    for r in range(80):
        a("v_mov_b32 %s, 0" % vr(ACC2 + r))
    stamp(a, 2)
    a.auto = False
    a.vm = []
    issued = ND
    for s in range(NSTEP):
        b = FR + (s % ND) * 36
        rem = issued - 1 - s
        if s == 12:
            stamp(a, 3)
        if s >= ND:
            a("s_waitcnt vmcnt(%d)" % (9 * rem))
        for t in range(5):
            for i in range(4):
                ac = ACC2 + (t * 4 + i) * 4
                mfma(a, ac, b + 4 * t, b + 20 + 4 * i, ac)
        if issued < NSTEP:
            if issued == 8:
                a("s_lshl_b32 s48, s51, 7")
                a("v_and_b32 %s, 31, %s" % (vr(T + 3), vr(L2)))
                a("v_lshlrev_b32 %s, 2, %s" % (vr(T + 3), vr(T + 3)))
                a("v_add_u32 %s, s48, %s" % (vr(T + 3), vr(T + 3)))
                a("buffer_load_dword %s, %s, s[60:63], 0 offen sc1" % (vr(T + 4), vr(T + 3)))
            if issued == 12:
                a("v_cmp_ne_u32 vcc, 1, %s" % vr(T + 4))
                a("s_cmp_eq_u64 vcc, 0")
                a("s_cbranch_scc1 Lk2_wf_ok")
                a("s_mov_b32 s49, 0")
                a.label("Lk2_wf")
                a.hist = []
                a("s_add_u32 s49, s49, 1")
                a("s_cmp_ge_u32 s49, 0x40000")
                a("s_cbranch_scc1 Lk2_wf_ok")
                a("s_sleep 1")
                a("buffer_load_dword %s, %s, s[60:63], 0 offen sc1" % (vr(T + 4), vr(T + 3)))
                a("s_waitcnt vmcnt(0)")
                a("v_cmp_ne_u32 vcc, 1, %s" % vr(T + 4))
                a("s_cmp_eq_u64 vcc, 0")
                a("s_cbranch_scc0 Lk2_wf")
                a.label("Lk2_wf_ok")
                a.hist = []
            loads(issued)
            issued += 1
    a.auto = True
    a.vm = []
    stamp(a, 4)
    a("s_barrier")
    a("v_and_b32 %s, 15, %s" % (vr(T), vr(L2)))
    a("v_lshrrev_b32 %s, 4, %s" % (vr(T + 2), vr(L2)))
    a("v_mul_u32_u24 %s, 320, %s" % (vr(T + 4), vr(T)))
    a("v_lshl_add_u32 %s, %s, 4, %s" % (vr(T + 4), vr(T + 2), vr(T + 4)))
    a("v_mul_u32_u24 %s, 20480, %s" % (vr(T + 5), vr(W2)))
    a("v_add_u32 %s, %s, %s" % (vr(T + 4), vr(T + 4), vr(T + 5)))
    for t in range(5):
        for i in range(4):
            ac = ACC2 + (t * 4 + i) * 4
            a("ds_write_b128 %s, %s offset:%d" % (vr(T + 4), vr(ac, 4), i * 16 * 320 + t * 64))
    make_srd(a, 28, 4, 2048 * 1280)
    make_srd(a, 32, 20, 2048 * 1280)
    a("s_mov_b32 s49, 0x1999999a")
    a("s_lshl_b32 s48, s51, 6")
    a("s_mul_i32 s50, s52, 160")
    for q in range(3):
        o = 10 * q
        a("v_add_u32 %s, %d, %s" % (vr(T), 256 * q, vr(TID)))
        a("v_mul_hi_u32 %s, %s, s49" % (vr(T + 1), vr(T)))
        a("v_mul_u32_u24 %s, 10, %s" % (vr(T + 2), vr(T + 1)))
        a("v_sub_u32 %s, %s, %s" % (vr(T + 2), vr(T), vr(T + 2)))
        a("v_mul_u32_u24 %s, 320, %s" % (vr(T + 3), vr(T + 1)))
        a("v_lshl_add_u32 %s, %s, 5, %s" % (vr(100 + q), vr(T + 2), vr(T + 3)))
        a("v_add_u32 %s, s48, %s" % (vr(T + 1), vr(T + 1)))
        a("v_mul_u32_u24 %s, 1280, %s" % (vr(T + 1), vr(T + 1)))
        a("v_lshl_add_u32 %s, %s, 4, %s" % (vr(T + 1), vr(T + 2), vr(T + 1)))
        a("v_add_u32 %s, s50, %s" % (vr(104 + q), vr(T + 1)))
        if q == 2:
            a("v_cmp_gt_u32 vcc, 640, %s" % vr(T))
            a("v_cndmask_b32 %s, 0, %s, vcc" % (vr(100 + q), vr(100 + q)))
            a("v_mov_b32 %s, 0x7fffff00" % vr(T + 4))
            a("v_cndmask_b32 %s, %s, %s, vcc" % (vr(104 + q), vr(T + 4), vr(104 + q)))
        a("buffer_load_dwordx4 %s, %s, s[28:31], 0 offen" % (vr(108 + 4 * q, 4), vr(104 + q)))
    a("s_waitcnt lgkmcnt(0)")
    a("s_barrier")
    for q in range(3):
        B = 128 + 32 * q
        for w in range(4):
            a("ds_read_b128 %s, %s offset:%d" % (vr(B + 8 * w, 4), vr(100 + q), w * 20480))
            a("ds_read_b128 %s, %s offset:%d" % (vr(B + 8 * w + 4, 4), vr(100 + q), w * 20480 + 16))
    for q in range(3):
        B = 128 + 32 * q
        for r in range(0, 8, 2):
            a(pk("add", B + r, vr(B + r, 2), vr(B + 8 + r, 2)))
            a(pk("add", B + 16 + r, vr(B + 16 + r, 2), vr(B + 24 + r, 2)))
        for r in range(0, 8, 2):
            a(pk("add", B + r, vr(B + r, 2), vr(B + 16 + r, 2)))
        for r in range(4):
            a("v_lshlrev_b32 %s, 16, %s" % (vr(B + 8 + 2 * r), vr(108 + 4 * q + r)))
            a("v_and_b32 %s, 0xffff0000, %s" % (vr(B + 9 + 2 * r), vr(108 + 4 * q + r)))
        for r in range(0, 8, 2):
            a(pk("add", B + r, vr(B + r, 2), vr(B + 8 + r, 2)))
        for r in range(4):
            a("v_cvt_pk_bf16_f32 %s, %s, %s" % (vr(B + 16 + r), vr(B + 2 * r), vr(B + 2 * r + 1)))
        a("buffer_store_dwordx4 %s, %s, s[32:35], 0 offen" % (vr(B + 16, 4), vr(104 + q)))
    a("s_waitcnt vmcnt(0)")
    dump_stamps(a, 6, 0x1210000)
    a.label("Lk2_exit")
    a("s_endpgm")


def kd(name, vgpr):
    return """.amdhsa_kernel %s
  .amdhsa_next_free_vgpr %d
  .amdhsa_next_free_sgpr 96
  .amdhsa_accum_offset %d
  .amdhsa_group_segment_fixed_size 0
  .amdhsa_kernarg_size 88
  .amdhsa_user_sgpr_count 2
  .amdhsa_user_sgpr_kernarg_segment_ptr 1
  .amdhsa_system_sgpr_workgroup_id_x 1
  .amdhsa_float_denorm_mode_32 3
.end_amdhsa_kernel
""" % (name, vgpr, (vgpr + 3) // 4 * 4)


def main():
    out = []
    out.append("; @launch kernel=k1_kernel grid=(256,1,1) block=(512,1,1) lds=%d" % K1_LDS)
    out.append("; @launch kernel=k2_kernel grid=(256,1,1) block=(256,1,1) lds=%d" % K2_LDS)
    out.append('.amdgcn_target "amdgcn-amd-amdhsa--gfx950"')
    out.append(".text")
    for nm, g in (("k1_kernel", gen_k1), ("k2_kernel", gen_k2)):
        a = Asm()
        g(a)
        out.append(".globl %s" % nm)
        out.append(".p2align 8")
        out.append(".type %s,@function" % nm)
        out.append(a.text())
    out.append('.section .rodata,"a"')
    for nm, v in (("k1_kernel", 256), ("k2_kernel", 256)):
        out.append(".p2align 6")
        out.append(kd(nm, v))
    path = os.environ.get("GENOUT", "cdna_kernels/%s.s" % NAME)
    open(path, "w").write("\n".join(out))
    print("wrote", path, sum(len(x) for x in out))


if __name__ == "__main__":
    main()
```

```python
import sys, os, struct
sys.path.insert(0, os.path.dirname(os.path.abspath(__file__)))
from asmdsl import Asm, vr, sr

FL = set(os.environ.get("GENFLAGS", "").split(","))
NAME = "parallel_sum__linear_kernel_hedgehog__glu_gated_geglu__prompt"

WS_HF = 0x000000
WS_PQF = 0x600000
WS_OF = 0xB00000
WS_W2F = 0xE00000
WS_KVA = 0x1100000
WS_ST = 0x1120000
WS_CS = 0x1128000
WS_FLG = 0x1130000
HF_BYTES = 128 * 48 * 1024
PQF_BYTES = 128 * 40 * 1024
OF_BYTES = 128 * 24 * 1024
W2F_BYTES = 8 * 72 * 5 * 1024
KVA_BYTES = 32 * 840 * 4
ST_BYTES = 2048 * 8
CS_BYTES = 4992 * 4

WSLOT = 24576
LDS_X = 4 * WSLOT
LDS_WPHI = LDS_X + 49152
LDS_ZERO = LDS_WPHI + 12800
LDS_DUMMY = LDS_ZERO + 64
K1_LDS = 163840
LOG2E = 1.4426950408889634
NPROD = 220


def f2u(x):
    return struct.unpack("<I", struct.pack("<f", x))[0]


def stamp(a, k):
    if "ts" not in FL:
        return
    a("s_waitcnt lgkmcnt(0)")
    a("s_memtime s[%d:%d]" % (70 + 2 * k, 71 + 2 * k))
    a("s_waitcnt lgkmcnt(0)")


def dump_stamps(a, n, base):
    if "ts" not in FL:
        return
    stamp(a, n - 1)
    a("s_add_u32 s56, s24, 0x%x" % base)
    a("s_addc_u32 s57, s25, 0")
    a("s_and_b32 s57, s57, 0xffff")
    a("s_mov_b32 s58, 0x10000")
    a("s_mov_b32 s59, 0x00020000")
    a("s_cmp_lg_u32 s47, 0")
    lab = "Lts%d" % len(a.lines)
    a("s_cbranch_scc1 %s" % lab)
    a("s_lshl_b32 s48, s2, 7")
    a("v_mov_b32 v1, s48")
    a("s_mov_b64 exec, 1")
    for k in range(n):
        a("v_mov_b32 v2, s%d" % (70 + 2 * k))
        a("v_mov_b32 v3, s%d" % (71 + 2 * k))
        a("buffer_store_dwordx2 v[2:3], v1, s[56:59], 0 offen offset:%d" % (8 * k))
    a("s_mov_b64 exec, -1")
    a.label(lab)


def load_kernargs(a):
    a("s_load_dwordx16 s[4:19], s[0:1], 0")
    a("s_load_dwordx4 s[20:23], s[0:1], 64")
    a("s_load_dwordx2 s[24:25], s[0:1], 80")


def make_srd(a, d, base, nbytes, off=0):
    if off:
        a("s_add_u32 s%d, s%d, 0x%x" % (d, base, off))
        a("s_addc_u32 s%d, s%d, 0" % (d + 1, base + 1))
        a("s_and_b32 s%d, s%d, 0xffff" % (d + 1, d + 1))
    else:
        a("s_mov_b32 s%d, s%d" % (d, base))
        a("s_and_b32 s%d, s%d, 0xffff" % (d + 1, base + 1))
    a("s_mov_b32 s%d, 0x%x" % (d + 2, nbytes))
    a("s_mov_b32 s%d, 0x00020000" % (d + 3))


def swap_add(a, x, t1, t2, which):
    a("v_mov_b32 %s, %s" % (vr(t1), vr(x)))
    a("v_mov_b32 %s, %s" % (vr(t2), vr(x)))
    a("v_permlane%d_swap_b32 %s, %s" % (which, vr(t1), vr(t2)))
    a("v_add_f32 %s, %s, %s" % (vr(x), vr(t1), vr(t2)))


def rnd2(a, x, y, t):
    a("v_cvt_pk_bf16_f32 %s, %s, %s" % (vr(t), vr(x), vr(y)))
    a("v_lshlrev_b32 %s, 16, %s" % (vr(x), vr(t)))
    a("v_and_b32 %s, 0xffff0000, %s" % (vr(y), vr(t)))


def split3(a, c, d0, t1, t2, t3):
    a("v_cvt_pk_bf16_f32 %s, %s, %s" % (vr(t1), vr(c), vr(c)))
    a("v_lshlrev_b32 %s, 16, %s" % (vr(t3), vr(t1)))
    a("v_sub_f32 %s, %s, %s" % (vr(c), vr(c), vr(t3)))
    a("v_cvt_pk_bf16_f32 %s, %s, %s" % (vr(t2), vr(c), vr(c)))
    a("v_lshlrev_b32 %s, 16, %s" % (vr(t3), vr(t2)))
    a("v_sub_f32 %s, %s, %s" % (vr(c), vr(c), vr(t3)))
    a("v_cvt_pk_bf16_f32 %s, %s, %s" % (vr(t3), vr(c), vr(c)))
    a("v_and_b32 %s, 0xffff, %s" % (vr(t1), vr(t1)))
    a("v_lshl_or_b32 %s, %s, 16, %s" % (vr(t1), vr(t2), vr(t1)))
    a("v_and_b32 %s, 0xffff, %s" % (vr(t3), vr(t3)))
    a("v_cndmask_b32 %s, 0, %s, vcc" % (vr(d0), vr(t1)))
    a("v_cndmask_b32 %s, 0, %s, vcc" % (vr(d0 + 1), vr(t3)))
    a("v_mov_b32 %s, 0" % vr(d0 + 2))
    a("v_mov_b32 %s, 0" % vr(d0 + 3))


class Rec:
    def __init__(self):
        self.l = []

    def __call__(self, t):
        self.l.append(t)

    def comment(self, t):
        pass


def merge(a, *recs):
    ls = [list(r.l) for r in recs]
    n = max(len(l) for l in ls)
    idx = [0] * len(ls)
    for k in range(1, n + 1):
        for q, l in enumerate(ls):
            tgt = (len(l) * k + n - 1) // n
            while idx[q] < min(tgt, len(l)):
                a(l[idx[q]])
                idx[q] += 1


def mfma(a, d, A, B, C):
    a("v_mfma_f32_16x16x32_bf16 %s, %s, %s, %s" % (vr(d, 4), vr(A, 4), vr(B, 4), "0" if C is None else vr(C, 4)))


ACC = 0
FB = 96
VOFFW = 192
VOFFX = 195
VXB = 197
VWB = 199
VL = 207
VW = 208
VTID = 209
T0 = 210
RS = 230
MF = 238


def signal(a, L, target_srd):
    a("s_cmp_ge_u32 s2, %d" % NPROD)
    a("s_cbranch_scc1 %s" % L)
    a("s_cmp_lg_u32 s47, 0")
    a("s_cbranch_scc1 %s" % L)
    a("v_mov_b32 %s, 1" % vr(T0))
    a("v_mov_b32 %s, 0" % vr(T0 + 1))
    a("s_mov_b64 exec, 1")
    a("buffer_atomic_add %s, %s, s[%d:%d], 0 offen sc1" % (vr(T0), vr(T0 + 1), target_srd, target_srd + 3))
    a("s_mov_b64 exec, -1")
    a.label(L)
    a.hist = []


PB = 214


def pre_issue(a, L):
    make_srd(a, 60, 22, 256)
    a("s_cmp_lg_u32 s2, %d" % NPROD)
    a("s_cbranch_scc1 %spp_nf" % L)
    make_srd(a, 56, 24, 4096, WS_FLG)
    a("v_lshlrev_b32 v1, 4, %s" % vr(VTID))
    for r in range(4):
        a("v_mov_b32 %s, 0" % vr(8 + r))
    a("buffer_store_dwordx4 v[8:11], v1, s[56:59], 0 offen")
    a.label(L + "pp_nf")
    a.hist = []
    a("s_cmp_ge_u32 s2, %d" % NPROD)
    a("s_cbranch_scc1 %spp_done" % L)
    a("s_cmp_ge_u32 s2, 206")
    a("s_cbranch_scc1 %spp_zero" % L)
    a("s_cmp_ge_u32 s2, 78")
    a("s_cbranch_scc1 %spp_stats" % L)
    make_srd(a, 56, 6, 640 * 3840)
    a("s_movk_i32 s54, 3840")
    a("s_lshl_b32 s55, s2, 7")
    a("s_cmp_lt_u32 s2, 30")
    a("s_cbranch_scc1 %spp_cs" % L)
    make_srd(a, 56, 14, 640 * 3072)
    a("s_movk_i32 s54, 3072")
    a("s_sub_u32 s55, s55, %d" % (30 * 128))
    a("s_cmp_lt_u32 s2, 54")
    a("s_cbranch_scc1 %spp_cs" % L)
    make_srd(a, 56, 16, 640 * 3072)
    a("s_sub_u32 s55, s55, %d" % (24 * 128))
    a.label(L + "pp_cs")
    a.hist = []
    a("v_and_b32 v1, 7, %s" % vr(VTID))
    a("v_lshrrev_b32 v2, 3, %s" % vr(VTID))
    a("v_mul_lo_u32 v2, v2, s54")
    a("v_lshl_add_u32 v2, v1, 4, v2")
    a("v_add_u32 v2, s55, v2")
    a("s_lshl_b32 s54, s54, 6")
    a("s_mov_b32 s55, 0")
    for i in range(10):
        a("buffer_load_dwordx4 %s, v2, s[56:59], s55 offen" % vr(PB + 4 * i, 4))
        if i < 9:
            a("s_add_u32 s55, s55, s54")
    a("s_branch %spp_done" % L)
    a.label(L + "pp_stats")
    a.hist = []
    a("s_sub_u32 s54, s2, 78")
    a("s_lshl_b32 s54, s54, 4")
    a("v_lshrrev_b32 v1, 5, %s" % vr(VTID))
    a("v_add_u32 v1, s54, v1")
    a("v_and_b32 v2, 31, %s" % vr(VTID))
    a("v_mul_u32_u24 v3, 40, v2")
    a("s_movk_i32 s55, 1280")
    a("v_mul_lo_u32 v4, v1, s55")
    a("v_add_u32 v3, v3, v4")
    a("buffer_load_dwordx4 %s, v3, s[28:31], 0 offen" % vr(PB, 4))
    a("buffer_load_dwordx4 %s, v3, s[28:31], 0 offen offset:16" % vr(PB + 4, 4))
    a("buffer_load_dwordx2 %s, v3, s[28:31], 0 offen offset:32" % vr(PB + 8, 2))
    a("s_branch %spp_done" % L)
    a.label(L + "pp_zero")
    a.hist = []
    make_srd(a, 56, 24, KVA_BYTES, WS_KVA)
    a("s_sub_u32 s54, s2, 206")
    a("s_mul_i32 s54, s54, 7680")
    a("v_lshlrev_b32 v1, 4, %s" % vr(VTID))
    a("v_add_u32 v1, s54, v1")
    a("v_mov_b32 v3, 0x7fffff00")
    a("v_cmp_gt_u32 vcc, 480, %s" % vr(VTID))
    a("v_cndmask_b32 v1, v3, v1, vcc")
    for r in range(4):
        a("v_mov_b32 %s, 0" % vr(8 + r))
    a("buffer_store_dwordx4 v[8:11], v1, s[56:59], 0 offen sc1")
    a.label(L + "pp_done")
    a.hist = []
    a.vm = []
    a.lg = []


def pre_stage1(a, L):
    t = T0
    lg_save = list(a.lg)
    a("s_cmp_ge_u32 s2, 206")
    a("s_cbranch_scc1 %sp1_done" % L)
    a("s_cmp_ge_u32 s2, 78")
    a("s_cbranch_scc1 %sp1_stats" % L)
    A8 = 144
    for d in range(4):
        a("v_lshlrev_b32 %s, 16, %s" % (vr(A8 + 2 * d), vr(PB + d)))
        a("v_and_b32 %s, 0xffff0000, %s" % (vr(A8 + 2 * d + 1), vr(PB + d)))
    for i in range(1, 10):
        for d in range(4):
            a("v_lshlrev_b32 %s, 16, %s" % (vr(152 + 2 * d), vr(PB + 4 * i + d)))
            a("v_and_b32 %s, 0xffff0000, %s" % (vr(153 + 2 * d), vr(PB + 4 * i + d)))
        for d in range(4):
            a("v_pk_add_f32 %s, %s, %s" % (vr(A8 + 2 * d, 2), vr(A8 + 2 * d, 2), vr(152 + 2 * d, 2)))
    for r in range(8):
        a("v_add_f32_dpp %s, %s, %s row_ror:8 row_mask:0xf bank_mask:0xf" % (vr(A8 + r), vr(A8 + r), vr(A8 + r)))
    for r in range(8):
        swap_add(a, A8 + r, 152 + 2 * (r & 3), 153 + 2 * (r & 3), 16)
    for r in range(8):
        swap_add(a, A8 + r, 152 + 2 * (r & 3), 153 + 2 * (r & 3), 32)
    a("v_and_b32 %s, 31, %s" % (vr(PB), vr(VTID)))
    a("v_lshlrev_b32 %s, 3, %s" % (vr(PB), vr(PB)))
    a("v_lshlrev_b32 %s, 5, %s" % (vr(t + 2), vr(VL)))
    a("v_lshl_add_u32 %s, %s, 8, %s" % (vr(t + 2), vr(VW), vr(t + 2)))
    a("v_add_u32 %s, %d, %s" % (vr(t + 2), LDS_WPHI, vr(t + 2)))
    a("v_mov_b32 %s, %d" % (vr(t + 3), LDS_DUMMY))
    a("v_cmp_gt_u32 vcc, 8, %s" % vr(VL))
    a("v_cndmask_b32 %s, %s, %s, vcc" % (vr(t + 2), vr(t + 3), vr(t + 2)))
    a("ds_write_b128 %s, %s" % (vr(t + 2), vr(A8, 4)))
    a("ds_write_b128 %s, %s offset:16" % (vr(t + 2), vr(A8 + 4, 4)))
    a("s_waitcnt lgkmcnt(0)")
    a("s_branch %sp1_done" % L)
    a.label(L + "p1_stats")
    a.hist = []
    S = PB + 12
    for r in range(4):
        a("v_mov_b32 %s, 0" % vr(S + r))
    for i in range(10):
        a("v_lshlrev_b32 %s, 16, %s" % (vr(t), vr(PB + i)))
        a("v_and_b32 %s, 0xffff0000, %s" % (vr(t + 1), vr(PB + i)))
        a("v_pk_add_f32 %s, %s, %s" % (vr(S, 2), vr(S, 2), vr(t, 2)))
        a("v_pk_fma_f32 %s, %s, %s, %s" % (vr(S + 2, 2), vr(t, 2), vr(t, 2), vr(S + 2, 2)))
    a("v_add_f32 %s, %s, %s" % (vr(S), vr(S), vr(S + 1)))
    a("v_add_f32 %s, %s, %s" % (vr(S + 2), vr(S + 2), vr(S + 3)))
    for ro in (8, 4, 2, 1):
        a("v_add_f32_dpp %s, %s, %s row_ror:%d row_mask:0xf bank_mask:0xf" % (vr(S), vr(S), vr(S), ro))
        a("v_add_f32_dpp %s, %s, %s row_ror:%d row_mask:0xf bank_mask:0xf" % (vr(S + 2), vr(S + 2), vr(S + 2), ro))
    swap_add(a, S, t, t + 1, 16)
    swap_add(a, S + 2, t, t + 1, 16)
    a("s_mov_b32 s55, 0x%x" % f2u(1.0 / 640.0))
    a("v_mul_f32 %s, s55, %s" % (vr(S), vr(S)))
    a("v_mul_f32 %s, s55, %s" % (vr(S + 2), vr(S + 2)))
    a("v_fma_f32 %s, -%s, %s, %s" % (vr(S + 2), vr(S), vr(S), vr(S + 2)))
    a("v_max_f32 %s, 0, %s" % (vr(S + 2), vr(S + 2)))
    a("v_cvt_pk_bf16_f32 %s, %s, %s" % (vr(t), vr(S), vr(S + 2)))
    a("v_lshlrev_b32 %s, 16, %s" % (vr(PB + 1), vr(t)))
    a("v_and_b32 %s, 0xffff0000, %s" % (vr(t + 1), vr(t)))
    a("v_add_f32 %s, 0x%x, %s" % (vr(t + 1), f2u(1e-5), vr(t + 1)))
    a("v_cvt_pk_bf16_f32 %s, %s, %s" % (vr(t + 1), vr(t + 1), vr(t + 1)))
    a("v_lshlrev_b32 %s, 16, %s" % (vr(t + 1), vr(t + 1)))
    a("v_sqrt_f32 %s, %s" % (vr(t + 1), vr(t + 1)))
    a("v_cvt_pk_bf16_f32 %s, %s, %s" % (vr(t + 1), vr(t + 1), vr(t + 1)))
    a("v_lshlrev_b32 %s, 16, %s" % (vr(t + 1), vr(t + 1)))
    a("v_rcp_f32 %s, %s" % (vr(PB), vr(t + 1)))
    make_srd(a, 56, 24, ST_BYTES, WS_ST)
    a("s_sub_u32 s54, s2, 78")
    a("s_lshl_b32 s54, s54, 4")
    a("v_lshrrev_b32 %s, 5, %s" % (vr(t + 2), vr(VTID)))
    a("v_add_u32 %s, s54, %s" % (vr(t + 2), vr(t + 2)))
    a("v_lshlrev_b32 %s, 3, %s" % (vr(t + 2), vr(t + 2)))
    a("v_and_b32 %s, 31, %s" % (vr(t), vr(VTID)))
    a("v_mov_b32 %s, 0x7fffff00" % vr(t + 3))
    a("v_cmp_eq_u32 vcc, 0, %s" % vr(t))
    a("v_cndmask_b32 %s, %s, %s, vcc" % (vr(t + 2), vr(t + 3), vr(t + 2)))
    a("buffer_store_dwordx2 %s, %s, s[56:59], 0 offen sc1" % (vr(PB, 2), vr(t + 2)))
    a.label(L + "p1_done")
    a.hist = []
    a.lg = lg_save


def pre_stage2(a, L):
    t = T0
    lg_save = list(a.lg)
    a("s_cmp_ge_u32 s2, 78")
    a("s_cbranch_scc1 %sp2_done" % L)
    a("s_waitcnt lgkmcnt(0)")
    a.lg = []
    a("v_add_u32 %s, %d, %s" % (vr(t + 2), LDS_WPHI, vr(PB)))
    for w in range(8):
        a("ds_read_b64 %s, %s offset:%d" % (vr(PB + 2 + 2 * w, 2), vr(t + 2), w * 256))
    for w in range(1, 8):
        a("v_pk_add_f32 %s, %s, %s" % (vr(PB + 2, 2), vr(PB + 2, 2), vr(PB + 2 + 2 * w, 2)))
    make_srd(a, 56, 24, CS_BYTES, WS_CS)
    a("s_lshl_b32 s55, s2, 8")
    a("v_add_u32 %s, s55, %s" % (vr(t), vr(PB)))
    a("v_mov_b32 %s, 0x7fffff00" % vr(t + 3))
    a("v_cmp_gt_u32 vcc, 32, %s" % vr(VTID))
    a("v_cndmask_b32 %s, %s, %s, vcc" % (vr(t), vr(t + 3), vr(t)))
    a("buffer_store_dwordx2 %s, %s, s[56:59], 0 offen sc1" % (vr(PB + 2, 2), vr(t)))
    a.label(L + "p2_done")
    a.hist = []
    a.lg = lg_save


def wait_flag(a, L, srd, off, target):
    a("v_mov_b32 %s, %d" % (vr(T0), off))
    a("s_mov_b32 s49, 0")
    a.label(L)
    a.hist = []
    a("buffer_load_dword %s, %s, s[%d:%d], 0 offen sc1" % (vr(T0 + 1), vr(T0), srd, srd + 3))
    a("s_waitcnt vmcnt(0)")
    a("v_readfirstlane_b32 s48, %s" % vr(T0 + 1))
    a("s_cmp_ge_u32 s48, %d" % target)
    a("s_cbranch_scc1 %s_ok" % L)
    a("s_sleep 8")
    a("s_add_u32 s49, s49, 1")
    a("s_cmp_lt_u32 s49, 0x10000")
    a("s_cbranch_scc1 %s" % L)
    a.label(L + "_ok")
    a.hist = []


def k1_path(a, T):
    NI = {"GU": 4, "KV": 2, "Q": 2}[T]
    NT = {"GU": 6, "KV": 10, "Q": 5}[T]
    HALF = {"GU": 3, "KV": 5, "Q": 5}[T]
    rowb = 3072 if T == "GU" else 3840
    L = "L%s_" % T
    nacc = NT * NI * 4

    def acc(t, i):
        return ACC + (t * NI + i) * 4

    a.comment("==== K1 path %s" % T)
    stamp(a, 0)
    a("v_mov_b32 %s, v0" % vr(VTID))
    a("v_and_b32 %s, 63, v0" % vr(VL))
    a("v_lshrrev_b32 %s, 6, v0" % vr(VW))
    a("v_readfirstlane_b32 s47, %s" % vr(VW))
    a("s_lshl_b32 s46, s47, 10")
    make_srd(a, 28, 4, 2048 * 1280)
    a("v_lshrrev_b32 %s, 3, %s" % (vr(T0), vr(VL)))
    a("v_and_b32 %s, 7, %s" % (vr(T0 + 1), vr(VL)))
    a("v_xor_b32 %s, %s, %s" % (vr(T0 + 2), vr(T0 + 1), vr(T0)))
    a("s_lshl_b32 s48, s51, 7")
    a("v_lshl_add_u32 %s, %s, 3, %s" % (vr(T0 + 3), vr(VW), vr(T0)))
    a("v_add_u32 %s, s48, %s" % (vr(T0 + 3), vr(T0 + 3)))
    a("s_movk_i32 s49, 1280")
    a("v_mul_lo_u32 %s, %s, s49" % (vr(T0 + 3), vr(T0 + 3)))
    a("v_lshl_add_u32 %s, %s, 4, %s" % (vr(VOFFX), vr(T0 + 2), vr(T0 + 3)))
    a("v_add_u32 %s, %d, %s" % (vr(VOFFX + 1), 64 * 1280, vr(VOFFX)))
    a("v_and_b32 %s, 3, %s" % (vr(T0 + 3), vr(VW)))
    a("v_bfe_u32 %s, %s, 1, 1" % (vr(T0 + 4), vr(T0)))
    a("v_and_b32 %s, 1, %s" % (vr(T0 + 5), vr(T0 + 3)))
    a("v_lshl_add_u32 %s, %s, 1, %s" % (vr(T0 + 4), vr(T0 + 5), vr(T0 + 4)))
    a("v_lshlrev_b32 %s, 1, %s" % (vr(T0 + 4), vr(T0 + 4)))
    a("v_xor_b32 %s, %s, %s" % (vr(T0 + 4), vr(T0 + 1), vr(T0 + 4)))
    a("v_lshl_add_u32 %s, %s, 3, %s" % (vr(T0 + 5), vr(T0 + 3), vr(T0)))
    a("s_movk_i32 s49, %d" % rowb)
    a("v_mul_lo_u32 %s, %s, s49" % (vr(T0 + 5), vr(T0 + 5)))
    a("v_lshl_add_u32 %s, %s, 4, %s" % (vr(T0 + 5), vr(T0 + 4), vr(T0 + 5)))
    a("v_lshrrev_b32 %s, 2, %s" % (vr(T0 + 6), vr(VW)))
    a("v_lshl_add_u32 %s, %s, 7, %s" % (vr(T0 + 5), vr(T0 + 6), vr(T0 + 5)))
    if T == "GU":
        a("s_mul_i32 s48, s52, 384")
        a("v_add_u32 %s, s48, %s" % (vr(VOFFW), vr(T0 + 5)))
        a("v_mov_b32 %s, 256" % vr(T0 + 7))
        a("v_mov_b32 %s, 0xffffff80" % vr(T0 + 8))
        a("v_cmp_eq_u32 vcc, 0, %s" % vr(T0 + 6))
        a("v_cndmask_b32 %s, %s, %s, vcc" % (vr(T0 + 7), vr(T0 + 8), vr(T0 + 7)))
        a("v_add_u32 %s, %s, %s" % (vr(VOFFW + 1), vr(T0 + 7), vr(VOFFW)))
        a("v_add_u32 %s, 128, %s" % (vr(VOFFW + 2), vr(VOFFW)))
        make_srd(a, 32, 14, 640 * 3072)
        make_srd(a, 36, 16, 640 * 3072)
        make_srd(a, 40, 14, 640 * 3072)
        a("s_cmp_lt_u32 s47, 4")
        a("s_cselect_b32 s40, s40, s36")
        a("s_cselect_b32 s41, s41, s37")
        srdw = [32, 40, 36]
    else:
        a("s_mul_i32 s48, s52, 80")
        a("s_and_b32 s48, s48, 0xffc0")
        a("s_lshl_b32 s48, s48, 1")
        a("v_add_u32 %s, s48, %s" % (vr(VOFFW), vr(T0 + 5)))
        a("v_add_u32 %s, 1280, %s" % (vr(VOFFW + 1), vr(VOFFW)))
        a("v_add_u32 %s, 2560, %s" % (vr(VOFFW + 2), vr(VOFFW)))
        make_srd(a, 32, 6, 640 * 3840)
        srdw = [32, 32, 32]
    a("s_mov_b32 s44, 0")
    a("s_mov_b32 s45, 0")

    lab = [0]

    def loadW(slot):
        for i in range(3):
            a("s_add_u32 m0, s46, 0x%x" % (slot * WSLOT + i * 8192))
            a("buffer_load_dwordx4 %s, s[%d:%d], s45 offen lds" % (vr(VOFFW + i), srdw[i], srdw[i] + 3))
        a("s_add_u32 s45, s45, %d" % (32 * rowb))

    def loadX(slot):
        for i in range(2):
            a("s_add_u32 m0, s46, 0x%x" % (LDS_X + slot * 16384 + i * 8192))
            a("buffer_load_dwordx4 %s, s[28:31], s44 offen lds" % vr(VOFFX + i))
        a("s_add_u32 s44, s44, 128")

    nW = 3
    groups = []

    def need(names):
        if not any(n in names for (n, c) in groups):
            return 0
        last = max(i for i, (n, c) in enumerate(groups) if n in names)
        return sum(c for (n, c) in groups[last + 1:])

    loadX(0); groups.append(("x0", 2))
    loadW(0); groups.append(("w0", nW))
    loadX(1); groups.append(("x1", 2))
    loadW(1); groups.append(("w1", nW))
    loadW(2); groups.append(("w2", nW))
    if T == "GU":
        wmsh, wnmask = 2, 3
    else:
        wmsh, wnmask = 0, 0
    a("v_and_b32 %s, 15, %s" % (vr(T0), vr(VL)))
    a("v_lshrrev_b32 %s, 4, %s" % (vr(T0 + 1), vr(VL)))
    a("v_lshrrev_b32 %s, %d, %s" % (vr(T0 + 3), wmsh, vr(VW)))
    if T != "GU":
        a("v_and_b32 %s, 3, %s" % (vr(T0 + 3), vr(T0 + 3)))
    a("v_and_b32 %s, %d, %s" % (vr(T0 + 4), wnmask, vr(VW)))
    a("v_and_b32 %s, 7, %s" % (vr(T0 + 5), vr(T0)))
    a("v_mul_u32_u24 %s, %d, %s" % (vr(T0 + 6), NI * 2048, vr(T0 + 3)))
    a("v_lshl_add_u32 %s, %s, 7, %s" % (vr(T0 + 6), vr(T0), vr(T0 + 6)))
    a("v_add_u32 %s, %d, %s" % (vr(T0 + 6), LDS_X, vr(T0 + 6)))
    for pk in range(2):
        a("v_add_u32 %s, %d, %s" % (vr(T0 + 7), 4 * pk, vr(T0 + 1)))
        a("v_xor_b32 %s, %s, %s" % (vr(T0 + 7), vr(T0 + 7), vr(T0 + 5)))
        a("v_lshl_add_u32 %s, %s, 4, %s" % (vr(VXB + pk), vr(T0 + 7), vr(T0 + 6)))
    a("v_bfe_u32 %s, %s, 3, 1" % (vr(T0 + 5), vr(T0)))
    a("v_and_b32 %s, 1, %s" % (vr(T0 + 6), vr(T0 + 1)))
    a("v_lshl_add_u32 %s, %s, 1, %s" % (vr(T0 + 5), vr(T0 + 6), vr(T0 + 5)))
    a("v_lshrrev_b32 %s, 2, %s" % (vr(T0 + 6), vr(T0)))
    a("v_lshl_add_u32 %s, %s, 3, %s" % (vr(T0 + 6), vr(T0 + 1), vr(T0 + 6)))
    a("v_lshlrev_b32 %s, 7, %s" % (vr(T0 + 6), vr(T0 + 6)))
    a("v_and_b32 %s, 3, %s" % (vr(T0 + 7), vr(T0)))
    a("v_lshl_add_u32 %s, %s, 3, %s" % (vr(T0 + 6), vr(T0 + 7), vr(T0 + 6)))
    a("v_mul_u32_u24 %s, %d, %s" % (vr(T0 + 7), HALF, vr(T0 + 4)))
    if T != "GU":
        a("s_mul_i32 s48, s52, 5")
        a("s_and_b32 s48, s48, 3")
        if T == "KV":
            a("s_add_u32 s48, s48, 8")
        a("v_add_u32 %s, s48, %s" % (vr(T0 + 7), vr(T0 + 7)))
    for j in range(4):
        a("v_add_u32 %s, %d, %s" % (vr(T0 + 8), j, vr(T0 + 7)))
        a("v_and_b32 %s, 3, %s" % (vr(T0 + 9), vr(T0 + 8)))
        a("v_xor_b32 %s, %s, %s" % (vr(T0 + 9), vr(T0 + 9), vr(T0 + 5)))
        a("v_lshl_add_u32 %s, %s, 5, %s" % (vr(T0 + 9), vr(T0 + 9), vr(T0 + 6)))
        a("v_lshrrev_b32 %s, 2, %s" % (vr(T0 + 8), vr(T0 + 8)))
        a("v_lshl_add_u32 %s, %s, 12, %s" % (vr(VWB + 2 * j), vr(T0 + 8), vr(T0 + 9)))
        a("v_add_u32 %s, 0x10000, %s" % (vr(VWB + 2 * j + 1), vr(VWB + 2 * j)))

    if T != "GU":
        nb = 4 * 800
        make_srd(a, 36, 8, 32 * 800)
        a("s_mul_i32 s48, s52, %d" % nb)
        a("v_lshlrev_b32 %s, 4, %s" % (vr(T0), vr(VTID)))
        a("v_add_u32 %s, s48, %s" % (vr(T0 + 1), vr(T0)))
        a("buffer_load_dwordx4 v[96:99], %s, s[36:39], 0 offen" % vr(T0 + 1))
        if nb > 8192:
            a("v_add_u32 %s, 8192, %s" % (vr(T0 + 2), vr(T0 + 1)))
            a("buffer_load_dwordx4 v[100:103], %s, s[36:39], 0 offen" % vr(T0 + 2))

    pre_issue(a, L)
    if T != "GU":
        nb = 4 * 800
        a("s_waitcnt vmcnt(0)")
        a.vm = []
        a("v_lshlrev_b32 %s, 4, %s" % (vr(T0), vr(VTID)))
        a("v_add_u32 %s, %d, %s" % (vr(T0 + 1), LDS_WPHI, vr(T0)))
        a("v_mov_b32 %s, %d" % (vr(T0 + 3), LDS_DUMMY))
        if nb > 8192:
            a("ds_write_b128 %s, v[96:99]" % vr(T0 + 1))
            a("v_add_u32 %s, 8192, %s" % (vr(T0 + 2), vr(T0 + 1)))
            a("v_cmp_gt_u32 vcc, %d, %s" % (nb - 8192, vr(T0)))
            a("v_cndmask_b32 %s, %s, %s, vcc" % (vr(T0 + 2), vr(T0 + 3), vr(T0 + 2)))
            a("ds_write_b128 %s, v[100:103]" % vr(T0 + 2))
        else:
            a("v_cmp_gt_u32 vcc, %d, %s" % (nb, vr(T0)))
            a("v_cndmask_b32 %s, %s, %s, vcc" % (vr(T0 + 1), vr(T0 + 3), vr(T0 + 1)))
            a("ds_write_b128 %s, v[96:99]" % vr(T0 + 1))
        for r in range(4):
            a("v_mov_b32 %s, 0" % vr(104 + r))
        a("v_and_b32 %s, 3, %s" % (vr(T0), vr(VTID)))
        a("v_lshlrev_b32 %s, 4, %s" % (vr(T0), vr(T0)))
        a("v_add_u32 %s, %d, %s" % (vr(T0), LDS_ZERO, vr(T0)))
        a("ds_write_b128 %s, v[104:107]" % vr(T0))
        a("s_waitcnt lgkmcnt(0)")
    a.vm = []
    stamp(a, 1)
    stamp(a, 2)
    for r in range(nacc):
        a("v_mov_b32 %s, 0" % vr(ACC + r))

    CSR = MF

    def stats_loads():
        make_srd(a, 56, 24, ST_BYTES, WS_ST)
        make_srd(a, 64, 24, CS_BYTES, WS_CS)
        a("v_and_b32 %s, 15, %s" % (vr(T0), vr(VL)))
        a("v_lshrrev_b32 %s, %d, %s" % (vr(T0 + 3), wmsh, vr(VW)))
        if T != "GU":
            a("v_and_b32 %s, 3, %s" % (vr(T0 + 3), vr(T0 + 3)))
        a("v_and_b32 %s, %d, %s" % (vr(T0 + 4), wnmask, vr(VW)))
        a("v_mul_u32_u24 %s, %d, %s" % (vr(T0 + 5), NI * 16, vr(T0 + 3)))
        a("v_add_u32 %s, %s, %s" % (vr(T0 + 5), vr(T0 + 5), vr(T0)))
        a("s_lshl_b32 s48, s51, 7")
        a("v_add_u32 %s, s48, %s" % (vr(T0 + 5), vr(T0 + 5)))
        a("v_lshlrev_b32 %s, 3, %s" % (vr(T0 + 5), vr(T0 + 5)))
        for i in range(NI):
            a("buffer_load_dwordx2 %s, %s, s[56:59], 0 offen offset:%d sc1" % (vr(RS + 2 * i, 2), vr(T0 + 5), 128 * i))
        if T == "GU":
            a("s_mul_i32 s48, s52, 192")
            a("s_add_u32 s48, s48, 1920")
            second = 1536
        elif T == "KV":
            a("s_mul_i32 s48, s52, 80")
            a("s_add_u32 s48, s48, 640")
            second = 640
        else:
            a("s_mul_i32 s48, s52, 80")
            second = 0
        a("v_mul_u32_u24 %s, %d, %s" % (vr(T0 + 6), 16 * HALF, vr(T0 + 4)))
        a("v_add3_u32 %s, %s, %s, s48" % (vr(T0 + 6), vr(T0 + 6), vr(T0)))
        a("v_lshlrev_b32 %s, 2, %s" % (vr(T0 + 6), vr(T0 + 6)))
        if second:
            a("v_add_u32 %s, %d, %s" % (vr(T0 + 7), second * 4, vr(T0 + 6)))
        for t in range(NT):
            j, up = t % HALF, t // HALF
            a("buffer_load_dword %s, %s, s[64:67], 0 offen offset:%d sc1" % (vr(CSR + t), vr(T0 + 7 if up else T0 + 6), 64 * j))

    FSZ = 48

    def rdfrags(s):
        fb = FB + (s & 1) * FSZ
        wb = (s & 3) * WSLOT
        xb = ((s >> 1) % 3) * 16384

        def rdx(i):
            a("ds_read_b128 %s, %s offset:%d" % (vr(fb + 4 * i, 4), vr(VXB + (s & 1)), xb + i * 2048))

        def rdw(t):
            j, up = t % HALF, t // HALF
            off = wb + (j >> 2) * 4096 + up * (12288 if T == "GU" else 8192)
            for h in range(2):
                o = off + h * 512
                a("ds_read_b64_tr_b16 %s, %s offset:%d" % (vr(fb + 4 * NI + 4 * t + 2 * h, 2), vr(VWB + 2 * (j & 3) + (o >> 16)), o & 0xFFFF))
        rdx(0)
        rdw(0)
        for i in range(1, NI):
            rdx(i)
        for t in range(1, NT):
            rdw(t)

    def mfmas(s):
        fb = FB + (s & 1) * FSZ
        for t in range(NT):
            for i in range(NI):
                if T == "KV" and t >= 5:
                    mfma(a, acc(t, i), fb + 4 * i, fb + 4 * NI + 4 * t, acc(t, i))
                else:
                    mfma(a, acc(t, i), fb + 4 * NI + 4 * t, fb + 4 * i, acc(t, i))

    a("s_waitcnt vmcnt(%d)" % need(["x0", "w0"]))
    a("s_barrier")
    a.vm = []
    rdfrags(0)
    for s in range(20):
        if s < 19:
            a("s_waitcnt vmcnt(%d)" % need(["x%d" % ((s + 1) >> 1), "w%d" % (s + 1)]))
            if s == 18:
                a("s_cmp_lg_u32 s47, 0")
                a("s_cbranch_scc1 %swf_ok" % L)
                a("v_readfirstlane_b32 s48, %s" % vr(T0 + 1))
                a("s_cmp_ge_u32 s48, %d" % NPROD)
                a("s_cbranch_scc1 %swf_ok" % L)
                wait_flag(a, L + "wf", 60, 0, NPROD)
            a("s_barrier")
            if s == 0:
                a("s_waitcnt vmcnt(0)")
                pre_stage1(a, L)
            if s == 1:
                pre_stage2(a, L)
            if s == 4:
                signal(a, L + "sig", 60)
            if s % 2 == 0 and s // 2 + 2 <= 9 and "noload" not in FL:
                loadX((s // 2 + 2) % 3); groups.append(("x%d" % (s // 2 + 2), 2))
            if s + 3 <= 19 and "noload" not in FL:
                loadW((s + 3) & 3); groups.append(("w%d" % (s + 3), nW))
            if s == 15:
                a("v_mov_b32 %s, 0" % vr(T0))
                a("buffer_load_dword %s, %s, s[60:63], 0 offen sc1" % (vr(T0 + 1), vr(T0)))
                groups.append(("fl", 1))
            if s == 18:
                stats_loads()
                groups.append(("st", NI + NT))
            a.vm = []
            if "nords" not in FL or s < 1:
                rdfrags(s + 1)
        mfmas(s)
    if "noepi" in FL:
        a("s_endpgm")
        return

    if T != "KV":
        a("s_barrier")
    stamp(a, 3)
    if T == "Q":
        a("s_waitcnt vmcnt(0)")
        repack_issue(a)
        a.vm = []
    else:
        a("s_waitcnt vmcnt(0)")
    stamp(a, 4)
    WF = 96
    MFR = 136
    a("v_cmp_gt_u32 vcc, 16, %s" % vr(VL))
    for i in range(NI):
        a("v_lshrrev_b32 %s, 16, %s" % (vr(T0 + 2), vr(RS + 2 * i + 1)))
        a("v_xor_b32 %s, 0x8000, %s" % (vr(T0 + 2), vr(T0 + 2)))
        a("v_lshl_or_b32 %s, %s, 16, %s" % (vr(T0 + 3), vr(T0 + 2), vr(T0 + 2)))
        a("v_cndmask_b32 %s, 0, %s, vcc" % (vr(MFR + 4 * i), vr(T0 + 3)))
        a("v_cndmask_b32 %s, 0, %s, vcc" % (vr(MFR + 4 * i + 1), vr(T0 + 2)))
        a("v_mov_b32 %s, 0" % vr(MFR + 4 * i + 2))
        a("v_mov_b32 %s, 0" % vr(MFR + 4 * i + 3))
    for t in range(NT):
        split3(a, CSR + t, WF + 4 * t, T0 + 3 * (t % 3), T0 + 1 + 3 * (t % 3), T0 + 2 + 3 * (t % 3))
    for t in range(NT):
        for i in range(NI):
            if T == "KV" and t >= 5:
                mfma(a, acc(t, i), MFR + 4 * i, WF + 4 * t, acc(t, i))
            else:
                mfma(a, acc(t, i), WF + 4 * t, MFR + 4 * i, acc(t, i))
    stamp(a, 5)
    R = dict(NI=NI, NT=NT, acc=acc, L=L, wnmask=wnmask)
    {"GU": epi_gu, "Q": epi_q, "KV": epi_kv}[T](a, R)
    if T == "Q":
        repack_finish(a)
    a("s_waitcnt vmcnt(0)")
    dump_stamps(a, 7, 0x1200000)
    a("s_endpgm")


def pk(op, d, x, y, z=None, bc=None):
    s = "v_pk_%s_f32 %s, %s, %s" % (op, vr(d, 2), x, y)
    if z is not None:
        s += ", " + z
    if bc:
        s += " op_sel_hi:[%s]" % ",".join(str(b) for b in bc)
    return s


def epi_gu(a, R):
    acc = R["acc"]
    make_srd(a, 40, 24, HF_BYTES, WS_HF)
    A0, A1 = 160, 161
    a("v_lshrrev_b32 %s, 2, %s" % (vr(T0), vr(VW)))
    a("v_mul_u32_u24 %s, 192, %s" % (vr(T0), vr(T0)))
    a("v_bfe_u32 %s, %s, 1, 1" % (vr(T0 + 1), vr(VW)))
    a("v_mul_u32_u24 %s, 3, %s" % (vr(T0 + 1), vr(T0 + 1)))
    a("s_mul_i32 s48, s51, 384")
    a("s_mul_i32 s49, s52, 6")
    a("s_add_u32 s48, s48, s49")
    a("v_add3_u32 %s, %s, %s, s48" % (vr(T0), vr(T0), vr(T0 + 1)))
    a("v_lshlrev_b32 %s, 10, %s" % (vr(T0), vr(T0)))
    a("v_lshl_add_u32 %s, %s, 4, %s" % (vr(T0), vr(VL), vr(T0)))
    a("v_and_b32 %s, 1, %s" % (vr(T0 + 1), vr(VW)))
    a("v_lshl_add_u32 %s, %s, 10, %s" % (vr(A0), vr(T0 + 1), vr(T0)))
    a("v_lshl_add_u32 %s, %s, 3, %s" % (vr(A1), vr(T0 + 1), vr(T0)))
    c0 = 2.0 * 0.7978845608028654 * LOG2E
    c1 = c0 * 0.044715
    a("v_mov_b32 v162, 0x%x" % f2u(-c1))
    a("v_mov_b32 v164, 0x%x" % f2u(-c0))
    a("s_mov_b32 s49, 0")
    for i in range(4):
        O = 168 + 8 * (i & 1)
        rs = vr(RS + 2 * i, 2)
        tt = [T0 + 4 * j for j in range(3)]
        for j in range(3):
            G, U = acc(j, i), acc(3 + j, i)
            for p in range(2):
                a(pk("mul", G + 2 * p, vr(G + 2 * p, 2), rs, bc=[1, 0]))
                a(pk("mul", U + 2 * p, vr(U + 2 * p, 2), rs, bc=[1, 0]))
        for j in range(3):
            G, t = acc(j, i), tt[j]
            for p in range(2):
                a(pk("mul", t + 2 * p, vr(G + 2 * p, 2), vr(G + 2 * p, 2)))
        for j in range(3):
            t = tt[j]
            for p in range(2):
                a(pk("fma", t + 2 * p, vr(t + 2 * p, 2), "v[162:163]", "v[164:165]", bc=[1, 0, 0]))
        for j in range(3):
            G, t = acc(j, i), tt[j]
            for p in range(2):
                a(pk("mul", t + 2 * p, vr(t + 2 * p, 2), vr(G + 2 * p, 2)))
        for j in range(3):
            for r in range(4):
                a("v_exp_f32 %s, %s" % (vr(tt[j] + r), vr(tt[j] + r)))
        for j in range(3):
            G, U = acc(j, i), acc(3 + j, i)
            for p in range(2):
                a(pk("mul", G + 2 * p, vr(G + 2 * p, 2), vr(U + 2 * p, 2)))
        for j in range(3):
            t = tt[j]
            for p in range(2):
                a(pk("add", t + 2 * p, vr(t + 2 * p, 2), "1.0", bc=[1, 0]))
        for j in range(3):
            for r in range(4):
                a("v_rcp_f32 %s, %s" % (vr(tt[j] + r), vr(tt[j] + r)))
        for j in range(3):
            G, t = acc(j, i), tt[j]
            for p in range(2):
                a(pk("mul", G + 2 * p, vr(G + 2 * p, 2), vr(t + 2 * p, 2)))
        for j in range(3):
            G = acc(j, i)
            a("v_cvt_pk_bf16_f32 %s, %s, %s" % (vr(O + 2 * j), vr(G), vr(G + 1)))
            a("v_cvt_pk_bf16_f32 %s, %s, %s" % (vr(O + 2 * j + 1), vr(G + 2), vr(G + 3)))
        a("buffer_store_dwordx4 %s, %s, s[40:43], s49 offen" % (vr(O, 4), vr(A0)))
        a("buffer_store_dwordx2 %s, %s, s[40:43], s49 offen offset:2048" % (vr(O + 4, 2), vr(A1)))
        if i < 3:
            a("s_add_u32 s49, s49, %d" % (48 * 1024))


def wphi_frags(a, R, AF, AD):
    wnmask = R["wnmask"]
    a("v_and_b32 %s, 3, %s" % (vr(T0), vr(VL)))
    a("v_bfe_u32 %s, %s, 2, 2" % (vr(T0 + 1), vr(VL)))
    a("v_lshrrev_b32 %s, 4, %s" % (vr(T0 + 2), vr(VL)))
    a("v_and_b32 %s, %d, %s" % (vr(T0 + 3), wnmask, vr(VW)))
    a("v_lshl_add_u32 %s, %s, 2, %s" % (vr(T0 + 3), vr(T0 + 3), vr(T0)))
    a("v_mul_u32_u24 %s, 800, %s" % (vr(T0 + 3), vr(T0 + 3)))
    a("v_add_u32 %s, %d, %s" % (vr(T0 + 3), LDS_WPHI, vr(T0 + 3)))
    a("v_mul_u32_u24 %s, 20, %s" % (vr(T0 + 4), vr(T0)))
    a("v_lshlrev_b32 %s, 2, %s" % (vr(T0 + 5), vr(T0 + 2)))
    a("v_sub_u32 %s, %s, %s" % (vr(T0 + 5), vr(T0 + 5), vr(T0 + 4)))
    a("v_mov_b32 %s, %d" % (vr(T0 + 8), LDS_ZERO))
    combos = [(0, 0), (0, 1), (1, 0), (1, 1), (2, 0)]
    for n, (c, hh) in enumerate(combos):
        a("v_add_u32 %s, %d, %s" % (vr(T0 + 6), 32 * c + 16 * hh, vr(T0 + 5)))
        a("v_cmp_gt_u32 vcc, 20, %s" % vr(T0 + 6))
        a("v_add_u32 %s, %s, %s" % (vr(T0 + 6), vr(T0 + 6), vr(T0 + 1)))
        a("v_mul_u32_u24 %s, 40, %s" % (vr(T0 + 6), vr(T0 + 6)))
        a("v_add_u32 %s, %s, %s" % (vr(T0 + 6), vr(T0 + 6), vr(T0 + 3)))
        a("v_cndmask_b32 %s, %s, %s, vcc" % (vr(AD + n), vr(T0 + 8), vr(T0 + 6)))
    for tp in range(5):
        for n, (c, hh) in enumerate(combos):
            a("ds_read_b64_tr_b16 %s, %s offset:%d" % (vr(AF + (tp * 3 + c) * 4 + 2 * hh, 2), vr(AD + n), tp * 8))
        a("v_mov_b32 %s, 0" % vr(AF + (tp * 3 + 2) * 4 + 2))
        a("v_mov_b32 %s, 0" % vr(AF + (tp * 3 + 2) * 4 + 3))


def phi_tile(a, R, i, AF, BQ, P, E, TT, pq_only=False):
    acc = R["acc"]
    rs = vr(RS + 2 * i, 2)
    p = lambda r: P[r >> 2] + (r & 3)
    e = lambda r: E[r >> 2] + (r & 3)
    for t in range(5):
        A = acc(t, i)
        for q in range(2):
            a(pk("mul", A + 2 * q, vr(A + 2 * q, 2), rs, bc=[1, 0]))
        bq = BQ[t >> 1] + 2 * (t & 1)
        a("v_cvt_pk_bf16_f32 %s, %s, %s" % (vr(bq), vr(A), vr(A + 1)))
        a("v_cvt_pk_bf16_f32 %s, %s, %s" % (vr(bq + 1), vr(A + 2), vr(A + 3)))
    a("v_mov_b32 %s, 0" % vr(BQ[2] + 2))
    a("v_mov_b32 %s, 0" % vr(BQ[2] + 3))
    for c in range(3):
        for tp in range(5):
            mfma(a, P[tp], AF + (tp * 3 + c) * 4, BQ[c], None if c == 0 else P[tp])
    if pq_only:
        for r in range(10):
            a("v_cvt_pk_bf16_f32 %s, %s, %s" % (vr(e(r)), vr(p(2 * r)), vr(p(2 * r + 1))))
        a("v_mov_b32 %s, 0" % vr(e(10)))
        a("v_mov_b32 %s, 0" % vr(e(11)))
        return
    softmax2(a, P, E, TT)


def softmax2(a, P, E, TT):
    p = lambda r: P[r >> 2] + (r & 3)
    e = lambda r: E[r >> 2] + (r & 3)
    mx, mn = TT, TT + 2
    a("v_max3_f32 %s, %s, %s, %s" % (vr(mx), vr(p(0)), vr(p(1)), vr(p(2))))
    a("v_min3_f32 %s, %s, %s, %s" % (vr(mn), vr(p(0)), vr(p(1)), vr(p(2))))
    for r in range(3, 19, 2):
        a("v_max3_f32 %s, %s, %s, %s" % (vr(mx), vr(mx), vr(p(r)), vr(p(r + 1))))
        a("v_min3_f32 %s, %s, %s, %s" % (vr(mn), vr(mn), vr(p(r)), vr(p(r + 1))))
    a("v_max_f32 %s, %s, %s" % (vr(mx), vr(mx), vr(p(19))))
    a("v_min_f32 %s, %s, %s" % (vr(mn), vr(mn), vr(p(19))))
    a("v_mov_b32 %s, 0x%x" % (vr(TT + 4), f2u(LOG2E)))
    a("v_mul_f32 %s, %s, %s" % (vr(mx), vr(mx), vr(TT + 4)))
    a("v_mul_f32 %s, %s, %s" % (vr(mn), vr(mn), vr(TT + 4)))
    for r in range(0, 20, 2):
        a(pk("fma", e(r), vr(p(r), 2), vr(TT + 4, 2), vr(mx, 2), bc=[1, 0, 0]) + " neg_lo:[0,0,1] neg_hi:[0,0,1]")
        a(pk("fma", p(r), vr(p(r), 2), vr(TT + 4, 2), vr(mn, 2), bc=[1, 0, 0]) + " neg_lo:[1,0,0] neg_hi:[1,0,0]")
    for r in range(20):
        a("v_exp_f32 %s, %s" % (vr(e(r)), vr(e(r))))
        a("v_exp_f32 %s, %s" % (vr(p(r)), vr(p(r))))
    s1, s2 = TT + 6, TT + 8
    a(pk("add", s1, vr(e(0), 2), vr(e(2), 2)))
    a(pk("add", s2, vr(p(0), 2), vr(p(2), 2)))
    for r in range(4, 20, 2):
        a(pk("add", s1, vr(s1, 2), vr(e(r), 2)))
        a(pk("add", s2, vr(s2, 2), vr(p(r), 2)))
    a("v_add_f32 %s, %s, %s" % (vr(s1), vr(s1), vr(s1 + 1)))
    a("v_add_f32 %s, %s, %s" % (vr(s2), vr(s2), vr(s2 + 1)))
    a("v_rcp_f32 %s, %s" % (vr(s1), vr(s1)))
    a("v_rcp_f32 %s, %s" % (vr(s2), vr(s2)))
    for r in range(0, 20, 2):
        a(pk("mul", e(r), vr(e(r), 2), vr(s1, 2), bc=[1, 0]))
        a(pk("mul", p(r), vr(p(r), 2), vr(s2, 2), bc=[1, 0]))
    for r in range(10):
        a("v_cvt_pk_bf16_f32 %s, %s, %s" % (vr(e(r)), vr(e(2 * r)), vr(e(2 * r + 1))))
    for r in range(10):
        a("v_cvt_pk_bf16_f32 %s, %s, %s" % (vr(e(10 + r)), vr(p(2 * r)), vr(p(2 * r + 1))))


def phi_pair(a, R, i0, AF, pq_only=False):
    acc = R["acc"]
    PA = [164 + 4 * k for k in range(5)]
    EA = [184 + 4 * k for k in range(5)]
    PB = [acc(t, i0) for t in range(5)]
    EB = [acc(t, i0 + 1) for t in range(5)]
    ra, rb = Rec(), Rec()
    phi_tile(ra, R, i0, AF, [80, 84, 88], PA, EA, T0, pq_only)
    phi_tile(rb, R, i0 + 1, AF, [92, 156, 238], PB, EB, T0 + 10, pq_only)
    head = 22
    for x, y in zip(ra.l[:head], rb.l[:head]):
        a(x)
        a(y)
    ra.l, rb.l = ra.l[head:], rb.l[head:]
    merge(a, ra, rb)
    return EA, EB


def epi_q(a, R):
    a.comment("Q epilogue")
    AF = 96
    AD = 156
    BQ = 164
    BQ = 80
    P, E = 164, 184
    make_srd(a, 40, 24, PQF_BYTES, WS_PQF)
    wphi_frags(a, R, AF, AD)
    A0 = 161
    a("v_and_b32 %s, 3, %s" % (vr(T0), vr(VW)))
    a("v_lshlrev_b32 %s, 4, %s" % (vr(T0), vr(T0)))
    a("s_lshl_b32 s48, s51, 6")
    a("s_add_u32 s48, s48, s52")
    a("v_add_u32 %s, s48, %s" % (vr(T0), vr(T0)))
    a("v_mul_u32_u24 %s, 3072, %s" % (vr(T0), vr(T0)))
    a("v_lshl_add_u32 %s, %s, 4, %s" % (vr(A0), vr(VL), vr(T0)))
    a("s_mov_b32 s49, %d" % (8 * 3072))
    a("s_movk_i32 s50, 4096")
    for qq in phi_pair(a, R, 0, AF, True):
        for c in range(3):
            a("buffer_store_dwordx4 %s, %s, s[40:43], 0 offen offset:%d" % (vr(qq[c], 4), vr(A0), 1024 * c))
        a("v_add_u32 %s, s49, %s" % (vr(A0), vr(A0)))


def epi_kv(a, R):
    acc = R["acc"]
    L = R["L"]
    AF = 96
    AD = 156
    ONE, RSF, RR = 164, 168, 176
    r1 = Rec()
    t1 = T0 + 10
    r1("v_cmp_gt_u32 vcc, 16, %s" % vr(VL))
    r1("v_mov_b32 %s, 0x3f803f80" % vr(t1))
    r1("v_mov_b32 %s, 0x3f80" % vr(t1 + 1))
    r1("v_cndmask_b32 %s, 0, %s, vcc" % (vr(ONE), vr(t1)))
    r1("v_cndmask_b32 %s, 0, %s, vcc" % (vr(ONE + 1), vr(t1 + 1)))
    r1("v_mov_b32 %s, 0" % vr(ONE + 2))
    r1("v_mov_b32 %s, 0" % vr(ONE + 3))
    for i in range(2):
        r1("v_mov_b32 %s, %s" % (vr(t1 + 4), vr(RS + 2 * i)))
        split3(r1, t1 + 4, RSF + 4 * i, t1, t1 + 1, t1 + 2)
    for x in r1.l:
        a(x)
    for i in range(2):
        mfma(a, RR + 4 * i, RSF + 4 * i, ONE, None)
    wphi_frags(a, R, AF, AD)
    for i in range(2):
        for j in range(5):
            A = acc(5 + j, i)
            for p in range(2):
                a(pk("mul", A + 2 * p, vr(A + 2 * p, 2), vr(RR + 4 * i + 2 * p, 2)))
    for j in range(5):
        A0_, A1_ = acc(5 + j, 0), acc(5 + j, 1)
        a("v_cvt_pk_bf16_f32 %s, %s, %s" % (vr(A0_), vr(A0_), vr(A0_ + 1)))
        a("v_cvt_pk_bf16_f32 %s, %s, %s" % (vr(A0_ + 1), vr(A0_ + 2), vr(A0_ + 3)))
        a("v_cvt_pk_bf16_f32 %s, %s, %s" % (vr(A0_ + 2), vr(A1_), vr(A1_ + 1)))
        a("v_cvt_pk_bf16_f32 %s, %s, %s" % (vr(A0_ + 3), vr(A1_ + 2), vr(A1_ + 3)))
    q0, q1 = phi_pair(a, R, 0, AF)
    SEL = 144
    ONES = 152
    a("v_and_b32 %s, 15, %s" % (vr(T0), vr(VL)))
    a("v_lshrrev_b32 %s, 4, %s" % (vr(T0 + 1), vr(VL)))
    a("v_lshrrev_b32 %s, 3, %s" % (vr(T0 + 2), vr(T0)))
    a("v_and_b32 %s, 7, %s" % (vr(T0 + 3), vr(T0)))
    a("v_and_b32 %s, 1, %s" % (vr(T0 + 4), vr(T0 + 3)))
    a("v_lshlrev_b32 %s, 4, %s" % (vr(T0 + 4), vr(T0 + 4)))
    a("v_mov_b32 %s, 0x3f80" % vr(T0 + 5))
    a("v_lshlrev_b32 %s, %s, %s" % (vr(T0 + 5), vr(T0 + 4), vr(T0 + 5)))
    a("v_lshrrev_b32 %s, 1, %s" % (vr(T0 + 3), vr(T0 + 3)))
    for aa in range(2):
        a("v_add_u32 %s, %d, %s" % (vr(T0 + 6), 2 * aa, vr(T0 + 2)))
        a("v_cmp_eq_u32 s[54:55], %s, %s" % (vr(T0 + 6), vr(T0 + 1)))
        a("v_cndmask_b32 %s, 0, %s, s[54:55]" % (vr(T0 + 7), vr(T0 + 5)))
        for r in range(4):
            a("v_cmp_eq_u32 vcc, %d, %s" % (r, vr(T0 + 3)))
            a("v_cndmask_b32 %s, 0, %s, vcc" % (vr(SEL + 4 * aa + r), vr(T0 + 7)))
    for r in range(4):
        a("v_mov_b32 %s, 0x3f803f80" % vr(ONES + r))
    A2 = 104
    D = 156
    combos = [(c, aa) for c in range(5) for aa in range(2)]
    WA = AF
    r2 = Rec()
    r2("v_mul_u32_u24 %s, 13440, %s" % (vr(T0 + 8), vr(VW)))
    r2("v_and_b32 %s, 1, %s" % (vr(T0 + 9), vr(T0 + 1)))
    r2("v_lshl_add_u32 %s, %s, 4, %s" % (vr(T0 + 8), vr(T0 + 9), vr(T0 + 8)))
    r2("v_lshrrev_b32 %s, 1, %s" % (vr(T0 + 9), vr(T0 + 1)))
    r2("v_mov_b32 %s, %d" % (vr(T0 + 10), LDS_DUMMY))
    pairs = []
    n = 0
    for aa in range(2):
        r2("v_add_u32 %s, %d, %s" % (vr(T0 + 11), 2 * aa, vr(T0 + 9)))
        r2("v_mul_u32_u24 %s, 3360, %s" % (vr(T0 + 12), vr(T0 + 11)))
        r2("v_add_u32 %s, %s, %s" % (vr(T0 + 12), vr(T0 + 12), vr(T0 + 8)))
        r2("v_mul_u32_u24 %s, 20, %s" % (vr(T0 + 13), vr(T0 + 11)))
        for Tt in ((0, 1, 2) if aa == 0 else (2, 3, 4)):
            r2("v_add_u32 %s, %d, %s" % (vr(T0 + 14), 16 * Tt, vr(T0)))
            r2("v_sub_u32 %s, %s, %s" % (vr(T0 + 14), vr(T0 + 14), vr(T0 + 13)))
            r2("v_cmp_gt_u32 vcc, 20, %s" % vr(T0 + 14))
            r2("v_mul_u32_u24 %s, 160, %s" % (vr(T0 + 14), vr(T0 + 14)))
            r2("v_add_u32 %s, %s, %s" % (vr(T0 + 14), vr(T0 + 14), vr(T0 + 12)))
            r2("v_cndmask_b32 %s, %s, %s, vcc" % (vr(WA + n), vr(T0 + 10), vr(T0 + 14)))
            pairs.append((aa, Tt, WA + n))
            n += 1
        r2("v_cmp_eq_u32 vcc, 0, %s" % vr(T0))
        r2("v_add_u32 %s, 3200, %s" % (vr(T0 + 14), vr(T0 + 12)))
        r2("v_cndmask_b32 %s, %s, %s, vcc" % (vr(WA + 6 + aa), vr(T0 + 10), vr(T0 + 14)))
    r3 = Rec()
    for n_ in range(12):
        if n_ < 10:
            c, aa = combos[n_]
            d = D + 8 * (n_ % 3)
            mfma(r3, d, q0[c], SEL + 4 * aa, None)
            mfma(r3, d + 4, q1[c], SEL + 4 * aa, None)
        if n_ >= 2:
            m_ = n_ - 2
            d = D + 8 * (m_ % 3)
            x = A2 + 4 * m_
            for r in range(4):
                r3("v_cvt_pk_bf16_f32 %s, %s, %s" % (vr(x + r), vr(d + 2 * r), vr(d + 2 * r + 1)))
    merge(a, r3, r2)
    a("s_waitcnt lgkmcnt(0)")
    a("s_barrier")
    stamp(a, 3)
    OUTS = [156, 230]
    for n_ in range(11):
        if n_ < 10:
            c, aa = combos[n_]
            o = OUTS[n_ & 1]
            x = A2 + 4 * n_
            ps = [p for p in pairs if p[0] == aa]
            for q, (_, Tt, ad) in enumerate(ps):
                mfma(a, o + 4 * q, x, acc(5 + Tt, 0), None)
            mfma(a, o + 12, x, ONES, None)
        if n_ >= 1:
            (c1, a1) = combos[n_ - 1]
            o1 = OUTS[(n_ - 1) & 1]
            ps1 = [p for p in pairs if p[0] == a1]
            for q, (_, Tt, ad) in enumerate(ps1):
                a("ds_write_b128 %s, %s offset:%d" % (vr(ad), vr(o1 + 4 * q, 4), 32 * c1))
            a("ds_write_b128 %s, %s offset:%d" % (vr(WA + 6 + a1), vr(o1 + 12, 4), 32 * c1))
    a("s_waitcnt lgkmcnt(0)")
    a("s_barrier")
    stamp(a, 4)
    make_srd(a, 40, 24, KVA_BYTES, WS_KVA)
    a("s_mul_i32 s48, s52, %d" % (4 * 3360))
    a("v_lshlrev_b32 %s, 2, %s" % (vr(T0), vr(VTID)))
    for q in range(14):
        b = 32 + 4 * q
        for wm in range(4):
            a("ds_read_b32 %s, %s offset:%d" % (vr(b + wm), vr(T0), wm * 13440 + q * 1024))
    a("v_mov_b32 %s, 0x7fffff00" % vr(T0 + 3))
    a("v_cmp_gt_u32 vcc, %d, %s" % (3360 - 13 * 256, vr(VTID)))
    a("v_cndmask_b32 %s, %s, %s, vcc" % (vr(T0 + 2), vr(T0 + 3), vr(T0)))
    for q in range(14):
        b = 32 + 4 * q
        a("v_add_f32 %s, %s, %s" % (vr(b), vr(b), vr(b + 1)))
        a("v_add_f32 %s, %s, %s" % (vr(b + 2), vr(b + 2), vr(b + 3)))
        a("v_add_f32 %s, %s, %s" % (vr(b), vr(b), vr(b + 2)))
        a("buffer_atomic_add_f32 %s, %s, s[40:43], s48 offen offset:%d sc1" % (vr(b), vr(T0 + 2 if q == 13 else T0), (q & 3) * 1024))
        if (q & 3) == 3:
            a("s_add_u32 s48, s48, 4096")


def repack_issue(a, warm=False):
    a.comment("==== repack job")
    W = "w" if warm else ""
    a("s_sub_u32 s48, s47, 4")
    a("s_lshl_b32 s48, s48, 7")
    a("s_sub_u32 s64, s2, 128")
    a("s_add_u32 s64, s64, s48")
    a("s_mov_b32 s69, s64")
    a("s_mov_b32 s65, 0")
    a("s_mov_b32 s66, 0")
    a("s_mov_b32 s68, 0")
    a("s_cmp_ge_u32 s64, 192")
    a("s_cbranch_scc1 Lrj%s_idone" % W)
    a("s_and_b32 s65, s64, 7")
    a("s_lshr_b32 s64, s64, 3")
    a("s_lshl_b32 s66, s47, 14")
    make_srd(a, 88, 18, 1536 * 1280)
    a("s_mul_i32 s67, s64, %d" % (96 * 1280))
    a("s_mul_i32 s68, s64, %d" % (3 * 5120))
    a("s_cmp_lt_u32 s64, 16")
    a("s_cbranch_scc1 Lrj%s_h" % W)
    make_srd(a, 88, 10, 640 * 1280)
    a("s_sub_u32 s49, s64, 16")
    a("s_mul_i32 s67, s49, %d" % (80 * 1280))
    a.label("Lrj%s_h" % W)
    a.hist = []
    a("s_mul_i32 s48, s65, 160")
    a("s_add_u32 s67, s67, s48")
    a("s_mov_b32 s49, 0x1999999a")
    for q in range(15):
        a("v_add_u32 v220, %d, %s" % (64 * q, vr(VL)))
        a("v_mul_hi_u32 v221, v220, s49")
        a("v_mul_u32_u24 v222, 10, v221")
        a("v_sub_u32 v222, v220, v222")
        a("v_mul_u32_u24 v221, 1280, v221")
        a("v_lshl_add_u32 v221, v222, 4, v221")
        if warm:
            a("s_mov_b32 m0, %d" % (LDS_WPHI + 4096))
        else:
            a("s_add_u32 m0, s66, %d" % (q * 1024))
        a("buffer_load_dwordx4 v221, s[88:91], s67 offen lds")
    if warm:
        a.label("Lrjw_done")
        a.hist = []
        return
    a.label("Lrj_idone")
    a.hist = []


def repack_finish(a):
    W = ""
    a("s_cmp_ge_u32 s69, 192")
    a("s_cbranch_scc1 Lrj_done")
    make_srd(a, 84, 24, W2F_BYTES, WS_W2F)
    a("v_and_b32 v3, 15, %s" % vr(VL))
    a("v_lshrrev_b32 v4, 4, %s" % vr(VL))
    a("v_and_b32 v6, 3, v3")
    a("v_lshlrev_b32 v6, 3, v6")
    a("v_add_u32 v6, s66, v6")
    a("v_lshrrev_b32 v7, 2, v3")
    a("s_mul_i32 s48, s65, %d" % (72 * 5120))
    a("s_add_u32 s48, s48, s68")
    a("v_lshlrev_b32 v8, 4, %s" % vr(VL))
    a("s_cmp_lt_u32 s64, 16")
    a("s_cbranch_scc0 Lrj%s_o" % W)
    a("v_lshl_add_u32 v9, v4, 2, v7")
    a("v_mul_u32_u24 v9, 160, v9")
    a("v_add_u32 v9, v9, v6")
    a("s_waitcnt vmcnt(0)")
    tiles = [(0, 16), (48, 64), (32, 80)]
    for cc in range(3):
        for t in range(5):
            d = 16 + 4 * (cc * 5 + t)
            for hh in range(2):
                a("ds_read_b64_tr_b16 %s, v9 offset:%d" % (vr(d + 2 * hh, 2), t * 32 + tiles[cc][hh] * 160))
    a("s_branch Lrj%s_st" % W)
    a.label("Lrj%s_o" % W)
    a.hist = []
    a.lg = []
    a("v_mul_u32_u24 v9, 20, v4")
    a("v_add_u32 v9, v9, v7")
    a("v_mul_u32_u24 v9, 160, v9")
    a("v_add_u32 v9, v9, v6")
    a("s_waitcnt vmcnt(0)")
    for c in range(3):
        for t in range(5):
            d = 16 + 4 * (c * 5 + t)
            a("ds_read_b64_tr_b16 %s, v9 offset:%d" % (vr(d, 2), t * 32 + 8 * c * 160))
            if c < 2:
                a("ds_read_b64_tr_b16 %s, v9 offset:%d" % (vr(d + 2, 2), t * 32 + (8 * c + 4) * 160))
            else:
                a("v_mov_b32 %s, 0" % vr(d + 2))
                a("v_mov_b32 %s, 0" % vr(d + 3))
    a.label("Lrj%s_st" % W)
    a.hist = []
    a("s_waitcnt lgkmcnt(0)")
    a.lg = []
    for n in range(15):
        d = 16 + 4 * n
        a("buffer_store_dwordx4 %s, v8, s[84:87], s48 offen offset:%d" % (vr(d, 4), (n & 3) * 1024))
        if (n & 3) == 3:
            a("s_add_u32 s48, s48, 4096")
    a.label("Lrj%s_done" % W)
    a.hist = []


def repack(a):
    a.comment("==== repack")
    a("v_and_b32 v1, 63, v0")
    a("v_lshrrev_b32 v2, 6, v0")
    a("v_readfirstlane_b32 s47, v2")
    a("s_sub_u32 s51, s2, 224")
    make_srd(a, 32, 24, W2F_BYTES, WS_W2F)
    a("v_and_b32 v3, 15, v1")
    a("v_lshrrev_b32 v4, 4, v1")
    a("v_lshlrev_b32 v5, 4, v0")
    a("s_lshl_b32 s46, s47, 10")
    a("v_mul_u32_u24 v6, 160, v2")
    a("v_and_b32 v7, 3, v3")
    a("v_lshl_add_u32 v6, v7, 3, v6")
    a("v_lshrrev_b32 v7, 2, v3")
    a("v_mul_u32_u24 v8, %d, v2" % (72 * 5120))
    a("v_lshl_add_u32 v8, v1, 4, v8")
    a("s_cmp_ge_u32 s51, 24")
    a("s_cbranch_scc1 Lrp_o")
    a("s_cmp_ge_u32 s51, 16")
    a("s_cbranch_scc1 Lk1_exit")
    make_srd(a, 28, 18, 1536 * 1280)
    a("s_mul_i32 s48, s51, %d" % (96 * 1280))
    for q in range(15):
        a("s_add_u32 m0, s46, %d" % (q * 8192))
        a("buffer_load_dwordx4 v5, s[28:31], s48 offen lds")
        a("s_add_u32 s48, s48, 8192")
    a("v_lshl_add_u32 v9, v4, 2, v7")
    a("v_mul_u32_u24 v9, 1280, v9")
    a("v_add_u32 v9, v9, v6")
    a("v_add_u32 v10, %d, v9" % (48 * 1280))
    a("s_waitcnt vmcnt(0)")
    a("s_barrier")
    a("s_mul_i32 s48, s51, %d" % (3 * 5120))
    tiles = [(0, 16), (48, 64), (32, 80)]
    for cc in range(3):
        for t in range(5):
            d = 16 + 4 * (cc * 5 + t)
            for hh in range(2):
                row = tiles[cc][hh]
                a("ds_read_b64_tr_b16 %s, %s offset:%d" % (vr(d + 2 * hh, 2), "v10" if row >= 48 else "v9", t * 32 + (row % 48) * 1280))
    for n in range(15):
        d = 16 + 4 * n
        a("buffer_store_dwordx4 %s, v8, s[32:35], s48 offen offset:%d" % (vr(d, 4), (n & 3) * 1024))
        if (n & 3) == 3:
            a("s_add_u32 s48, s48, 4096")
    a("s_endpgm")
    a.label("Lrp_o")
    a.hist = []
    make_srd(a, 28, 10, 640 * 1280)
    a("s_sub_u32 s51, s51, 24")
    a("s_mul_i32 s48, s51, %d" % (80 * 1280))
    for q in range(13):
        a("s_add_u32 m0, s46, %d" % (q * 8192))
        a("buffer_load_dwordx4 v5, s[28:31], s48 offen lds")
        a("s_add_u32 s48, s48, 8192")
    a("v_mul_u32_u24 v9, 20, v4")
    a("v_add_u32 v9, v9, v7")
    a("v_mul_u32_u24 v9, 1280, v9")
    a("v_add_u32 v9, v9, v6")
    a("s_waitcnt vmcnt(0)")
    a("s_barrier")
    for c in range(3):
        for t in range(5):
            d = 16 + 4 * (c * 5 + t)
            a("ds_read_b64_tr_b16 %s, v9 offset:%d" % (vr(d, 2), t * 32 + 8 * c * 1280))
            if c < 2:
                a("ds_read_b64_tr_b16 %s, v9 offset:%d" % (vr(d + 2, 2), t * 32 + (8 * c + 4) * 1280))
            else:
                a("v_mov_b32 %s, 0" % vr(d + 2))
                a("v_mov_b32 %s, 0" % vr(d + 3))
    a("s_mul_i32 s48, s51, %d" % (3 * 5120))
    a("s_add_u32 s48, s48, %d" % (48 * 5120))
    for n in range(15):
        d = 16 + 4 * n
        a("buffer_store_dwordx4 %s, v8, s[32:35], s48 offen offset:%d" % (vr(d, 4), (n & 3) * 1024))
        if (n & 3) == 3:
            a("s_add_u32 s48, s48, 4096")
    a("s_endpgm")


def gen_k1(a):
    a.label("k1_kernel")
    load_kernargs(a)
    a("s_cmp_ge_u32 s2, 256")
    a("s_cbranch_scc1 Lk1_exit")
    a("s_waitcnt lgkmcnt(0)")
    a("s_cmp_ge_u32 s2, 128")
    a("s_cbranch_scc1 Lk1_qkv")
    a("s_lshr_b32 s51, s2, 3")
    a("s_and_b32 s52, s2, 7")
    k1_path(a, "GU")
    a.label("Lk1_qkv")
    a.hist = []
    a("s_sub_u32 s48, s2, 128")
    a("s_lshr_b32 s51, s48, 3")
    a("s_and_b32 s52, s48, 7")
    a("v_readfirstlane_b32 s47, v0")
    a("s_cmp_ge_u32 s47, 256")
    a("s_cbranch_scc1 Lk1_q")
    k1_path(a, "KV")
    a.label("Lk1_q")
    a.hist = []
    k1_path(a, "Q")
    a.label("Lk1_exit")
    a("s_endpgm")


K2_LDS = 81920
ND = 4


def gen_k2(a):
    a.label("k2_kernel")
    load_kernargs(a)
    a("s_cmp_ge_u32 s2, 256")
    a("s_cbranch_scc1 Lk2_exit")
    a("s_waitcnt lgkmcnt(0)")
    a("s_and_b32 s51, s2, 31")
    a("s_lshr_b32 s52, s2, 5")
    make_srd(a, 28, 24, HF_BYTES, WS_HF)
    make_srd(a, 32, 24, OF_BYTES, WS_OF)
    make_srd(a, 36, 24, W2F_BYTES, WS_W2F)
    make_srd(a, 40, 24, PQF_BYTES, WS_PQF)
    make_srd(a, 56, 24, KVA_BYTES, WS_KVA)
    make_srd(a, 60, 24, 4096, WS_FLG)
    ACC2 = 0
    FR = 80
    VA, VO, VWt = 224, 225, 226
    L2, W2, TID = 227, 228, 229
    T = 230
    a("v_mov_b32 %s, v0" % vr(TID))
    a("v_and_b32 %s, 63, v0" % vr(L2))
    a("v_lshrrev_b32 %s, 6, v0" % vr(W2))
    a("v_readfirstlane_b32 s47, %s" % vr(W2))
    stamp(a, 0)
    a("s_mul_i32 s48, s51, %d" % (4 * 48 * 1024))
    if "sameA" in FL:
        a("s_mov_b32 s48, 0")
    a("v_lshlrev_b32 %s, 4, %s" % (vr(T), vr(L2)))
    a("v_lshl_add_u32 %s, %s, 10, %s" % (vr(T + 1), vr(W2), vr(T)))
    a("v_add_u32 %s, s48, %s" % (vr(VA), vr(T + 1)))
    a("s_mul_i32 s48, s51, %d" % (4 * 24 * 1024))
    a("v_add_u32 %s, s48, %s" % (vr(VO), vr(T + 1)))
    a("s_mul_i32 s48, s52, %d" % (72 * 5120))
    if "sameW" in FL:
        a("s_mov_b32 s48, 0")
    a("v_mul_u32_u24 %s, 5120, %s" % (vr(T + 2), vr(W2)))
    a("v_add3_u32 %s, %s, %s, s48" % (vr(VWt), vr(T + 2), vr(T)))

    NSTEP = 18

    a("s_mul_i32 s53, s51, 0x5556")
    a("s_lshr_b32 s53, s53, 18")
    a("s_mul_i32 s53, s53, 12")
    a("s_sub_u32 s53, s51, s53")
    if "norot" in FL:
        a("s_mov_b32 s53, 0")

    def loads(s):
        b = FR + (s % ND) * 36
        if s == 12:
            a("s_lshr_b32 s53, s53, 1")
        a("s_mul_i32 s48, s53, 20480")
        if s >= 12:
            a("s_add_u32 s48, s48, %d" % (12 * 20480))
        a("s_add_u32 s49, s48, 4096")
        for t in range(5):
            a("buffer_load_dwordx4 %s, %s, s[36:39], s48 offen offset:%d" % (vr(b + 4 * t, 4), vr(VWt), t * 1024) if t < 4 else
              "buffer_load_dwordx4 %s, %s, s[36:39], s49 offen" % (vr(b + 4 * t, 4), vr(VWt)))
        a("s_lshl_b32 s48, s53, 12")
        for i in range(4):
            if s < 12:
                a("buffer_load_dwordx4 %s, %s, s[28:31], s48 offen" % (vr(b + 20 + 4 * i, 4), vr(VA)))
                a("s_add_u32 s48, s48, %d" % (48 * 1024))
            else:
                a("buffer_load_dwordx4 %s, %s, s[32:35], s48 offen sc1" % (vr(b + 20 + 4 * i, 4), vr(VO)))
                a("s_add_u32 s48, s48, %d" % (24 * 1024))
        a("s_add_u32 s53, s53, 1")
        a("s_cmp_ge_u32 s53, %d" % (12 if s < 12 else 6))
        a("s_cselect_b32 s53, 0, s53")

    a.auto = True
    a("s_mul_i32 s48, s52, %d" % (4 * 3360))
    a("v_lshlrev_b32 %s, 4, %s" % (vr(T + 3), vr(TID)))
    a("v_add_u32 %s, s48, %s" % (vr(T + 4), vr(T + 3)))
    a("v_mov_b32 %s, 0x7fffff00" % vr(T + 5))
    a("v_cmp_gt_u32 vcc, %d, %s" % (840 - 768, vr(TID)))
    a("v_cndmask_b32 %s, %s, %s, vcc" % (vr(T + 5), vr(T + 5), vr(T + 4)))
    for q in range(3):
        a("buffer_load_dwordx4 %s, %s, s[56:59], 0 offen offset:%d" % (vr(4 * q, 4), vr(T + 4), 0) if q == 0 else
          "buffer_load_dwordx4 %s, %s, s[56:59], s49 offen" % (vr(4 * q, 4), vr(T + 4)))
        a("s_mov_b32 s49, %d" % (4096 * (q + 1)))
    a("buffer_load_dwordx4 v[12:15], %s, s[56:59], s49 offen" % vr(T + 5))
    a("s_lshl_b32 s48, s51, 5")
    a("s_add_u32 s48, s48, s52")
    a("s_mul_i32 s48, s48, 3072")
    a("v_mul_u32_u24 %s, %d, %s" % (vr(T + 6), 8 * 3072, vr(W2)))
    a("v_add3_u32 %s, %s, %s, s48" % (vr(T + 6), vr(T + 6), vr(T)))
    for c in range(3):
        a("buffer_load_dwordx4 %s, %s, s[40:43], 0 offen offset:%d" % (vr(60 + 4 * c, 4), vr(T + 6), c * 1024))
    n_before = len(a.vm)
    for s in range(ND):
        loads(s)
    a("v_lshlrev_b32 %s, 3, %s" % (vr(T + 3), vr(TID)))
    for q in range(4):
        a("v_cvt_pk_bf16_f32 %s, %s, %s" % (vr(4 * q), vr(4 * q), vr(4 * q + 1)))
        a("v_cvt_pk_bf16_f32 %s, %s, %s" % (vr(4 * q + 1), vr(4 * q + 2), vr(4 * q + 3)))
        a("ds_write_b64 %s, %s offset:%d" % (vr(T + 3), vr(4 * q, 2), q * 2048))
    for r in range(10):
        a("v_lshlrev_b32 %s, 16, %s" % (vr(36 + 2 * r), vr(60 + r)))
        a("v_and_b32 %s, 0xffff0000, %s" % (vr(37 + 2 * r), vr(60 + r)))
    softmax2(a, [36 + 4 * k for k in range(5)], [16 + 4 * k for k in range(5)], 0)
    a("s_waitcnt lgkmcnt(0)")
    a("s_barrier")
    stamp(a, 1)
    a("v_bfe_u32 %s, %s, 2, 2" % (vr(T + 3), vr(L2)))
    a("v_and_b32 %s, 3, %s" % (vr(T + 4), vr(L2)))
    a("v_lshrrev_b32 %s, 4, %s" % (vr(T + 5), vr(L2)))
    a("v_mul_u32_u24 %s, 1680, %s" % (vr(T + 7), vr(T + 3)))
    a("v_mul_u32_u24 %s, 80, %s" % (vr(T + 4), vr(T + 4)))
    a("v_add_u32 %s, %s, %s" % (vr(T + 4), vr(T + 4), vr(T + 7)))
    a("v_add_u32 %s, 1600, %s" % (vr(T + 7), vr(T + 7)))
    a("v_cmp_eq_u32 vcc, %s, %s" % (vr(T + 3), vr(T + 5)))
    a("v_mov_b32 %s, 6720" % vr(T + 8))
    a("v_cndmask_b32 %s, %s, %s, vcc" % (vr(T + 7), vr(T + 8), vr(T + 7)))
    for tp in range(5):
        a("v_add_u32 %s, %d, %s" % (vr(T + 9), 320 * tp, vr(T + 4)))
        a("v_cndmask_b32 %s, %s, %s, vcc" % (vr(T + 10 + tp), vr(T + 8), vr(T + 9)))
    NUM = 36
    DEN = 56
    AFr = 60
    for tp in range(6):
        ad = T + 10 + tp if tp < 5 else T + 7
        dst = NUM + 4 * tp if tp < 5 else DEN
        for c in range(5):
            a("ds_read_b128 %s, %s offset:%d" % (vr(AFr + 4 * c, 4), vr(ad), c * 16))
        for c in range(5):
            mfma(a, dst, AFr + 4 * c, 16 + 4 * c, None if c == 0 else dst)
    a("v_cvt_pk_bf16_f32 %s, %s, %s" % (vr(T + 3), vr(DEN), vr(DEN)))
    a("v_lshlrev_b32 %s, 16, %s" % (vr(T + 3), vr(T + 3)))
    a("v_add_f32 %s, 0x%x, %s" % (vr(T + 3), f2u(1e-6), vr(T + 3)))
    a("v_cvt_pk_bf16_f32 %s, %s, %s" % (vr(T + 3), vr(T + 3), vr(T + 3)))
    a("v_lshlrev_b32 %s, 16, %s" % (vr(T + 3), vr(T + 3)))
    a("v_rcp_f32 %s, %s" % (vr(T + 4), vr(T + 3)))
    for r in range(0, 20, 2):
        rnd2(a, NUM + r, NUM + r + 1, T + 5)
    for r in range(0, 20, 2):
        a(pk("mul", NUM + r, vr(NUM + r, 2), vr(T + 4, 2), bc=[1, 0]))
    for r in range(10):
        a("v_cvt_pk_bf16_f32 %s, %s, %s" % (vr(60 + r), vr(NUM + 2 * r), vr(NUM + 2 * r + 1)))
    a("v_mov_b32 v70, 0")
    a("v_mov_b32 v71, 0")
    a("s_lshl_b32 s48, s51, 5")
    a("s_add_u32 s48, s48, s52")
    a("s_mul_i32 s48, s48, 3072")
    a("v_mul_u32_u24 %s, %d, %s" % (vr(T + 6), 8 * 3072, vr(W2)))
    a("v_add3_u32 %s, %s, %s, s48" % (vr(T + 6), vr(T + 6), vr(T)))
    for c in range(3):
        a("buffer_store_dwordx4 %s, %s, s[32:35], 0 offen offset:%d sc1" % (vr(60 + 4 * c, 4), vr(T + 6), c * 1024))
    a("s_waitcnt vmcnt(0)")
    a("v_mov_b32 %s, 1" % vr(T + 3))
    a("s_lshl_b32 s48, s51, 7")
    a("s_lshl_b32 s49, s52, 4")
    a("s_add_u32 s48, s48, s49")
    a("s_lshl_b32 s49, s47, 2")
    a("s_add_u32 s48, s48, s49")
    a("v_mov_b32 %s, s48" % vr(T + 4))
    a("s_mov_b64 exec, 1")
    a("buffer_store_dword %s, %s, s[60:63], 0 offen sc1" % (vr(T + 3), vr(T + 4)))
    a("s_mov_b64 exec, -1")
    for r in range(80):
        a("v_mov_b32 %s, 0" % vr(ACC2 + r))
    stamp(a, 2)
    a.auto = False
    a.vm = []
    issued = ND
    for s in range(NSTEP):
        b = FR + (s % ND) * 36
        rem = issued - 1 - s
        if s == 12:
            stamp(a, 3)
        if s >= ND:
            a("s_waitcnt vmcnt(%d)" % (9 * rem))
        for t in range(5):
            for i in range(4):
                ac = ACC2 + (t * 4 + i) * 4
                mfma(a, ac, b + 4 * t, b + 20 + 4 * i, ac)
        if issued < NSTEP:
            if issued == 8:
                a("s_lshl_b32 s48, s51, 7")
                a("v_and_b32 %s, 31, %s" % (vr(T + 3), vr(L2)))
                a("v_lshlrev_b32 %s, 2, %s" % (vr(T + 3), vr(T + 3)))
                a("v_add_u32 %s, s48, %s" % (vr(T + 3), vr(T + 3)))
                a("buffer_load_dword %s, %s, s[60:63], 0 offen sc1" % (vr(T + 4), vr(T + 3)))
            if issued == 12:
                a("v_cmp_ne_u32 vcc, 1, %s" % vr(T + 4))
                a("s_cmp_eq_u64 vcc, 0")
                a("s_cbranch_scc1 Lk2_wf_ok")
                a("s_mov_b32 s49, 0")
                a.label("Lk2_wf")
                a.hist = []
                a("s_add_u32 s49, s49, 1")
                a("s_cmp_ge_u32 s49, 0x40000")
                a("s_cbranch_scc1 Lk2_wf_ok")
                a("s_sleep 1")
                a("buffer_load_dword %s, %s, s[60:63], 0 offen sc1" % (vr(T + 4), vr(T + 3)))
                a("s_waitcnt vmcnt(0)")
                a("v_cmp_ne_u32 vcc, 1, %s" % vr(T + 4))
                a("s_cmp_eq_u64 vcc, 0")
                a("s_cbranch_scc0 Lk2_wf")
                a.label("Lk2_wf_ok")
                a.hist = []
            loads(issued)
            issued += 1
    a.auto = True
    a.vm = []
    stamp(a, 4)
    a("s_barrier")
    a("v_and_b32 %s, 15, %s" % (vr(T), vr(L2)))
    a("v_lshrrev_b32 %s, 4, %s" % (vr(T + 2), vr(L2)))
    a("v_mul_u32_u24 %s, 320, %s" % (vr(T + 4), vr(T)))
    a("v_lshl_add_u32 %s, %s, 4, %s" % (vr(T + 4), vr(T + 2), vr(T + 4)))
    a("v_mul_u32_u24 %s, 20480, %s" % (vr(T + 5), vr(W2)))
    a("v_add_u32 %s, %s, %s" % (vr(T + 4), vr(T + 4), vr(T + 5)))
    for t in range(5):
        for i in range(4):
            ac = ACC2 + (t * 4 + i) * 4
            a("ds_write_b128 %s, %s offset:%d" % (vr(T + 4), vr(ac, 4), i * 16 * 320 + t * 64))
    make_srd(a, 28, 4, 2048 * 1280)
    make_srd(a, 32, 20, 2048 * 1280)
    a("s_mov_b32 s49, 0x1999999a")
    a("s_lshl_b32 s48, s51, 6")
    a("s_mul_i32 s50, s52, 160")
    for q in range(3):
        o = 10 * q
        a("v_add_u32 %s, %d, %s" % (vr(T), 256 * q, vr(TID)))
        a("v_mul_hi_u32 %s, %s, s49" % (vr(T + 1), vr(T)))
        a("v_mul_u32_u24 %s, 10, %s" % (vr(T + 2), vr(T + 1)))
        a("v_sub_u32 %s, %s, %s" % (vr(T + 2), vr(T), vr(T + 2)))
        a("v_mul_u32_u24 %s, 320, %s" % (vr(T + 3), vr(T + 1)))
        a("v_lshl_add_u32 %s, %s, 5, %s" % (vr(100 + q), vr(T + 2), vr(T + 3)))
        a("v_add_u32 %s, s48, %s" % (vr(T + 1), vr(T + 1)))
        a("v_mul_u32_u24 %s, 1280, %s" % (vr(T + 1), vr(T + 1)))
        a("v_lshl_add_u32 %s, %s, 4, %s" % (vr(T + 1), vr(T + 2), vr(T + 1)))
        a("v_add_u32 %s, s50, %s" % (vr(104 + q), vr(T + 1)))
        if q == 2:
            a("v_cmp_gt_u32 vcc, 640, %s" % vr(T))
            a("v_cndmask_b32 %s, 0, %s, vcc" % (vr(100 + q), vr(100 + q)))
            a("v_mov_b32 %s, 0x7fffff00" % vr(T + 4))
            a("v_cndmask_b32 %s, %s, %s, vcc" % (vr(104 + q), vr(T + 4), vr(104 + q)))
        a("buffer_load_dwordx4 %s, %s, s[28:31], 0 offen" % (vr(108 + 4 * q, 4), vr(104 + q)))
    a("s_waitcnt lgkmcnt(0)")
    a("s_barrier")
    for q in range(3):
        B = 128 + 32 * q
        for w in range(4):
            a("ds_read_b128 %s, %s offset:%d" % (vr(B + 8 * w, 4), vr(100 + q), w * 20480))
            a("ds_read_b128 %s, %s offset:%d" % (vr(B + 8 * w + 4, 4), vr(100 + q), w * 20480 + 16))
    for q in range(3):
        B = 128 + 32 * q
        for r in range(0, 8, 2):
            a(pk("add", B + r, vr(B + r, 2), vr(B + 8 + r, 2)))
            a(pk("add", B + 16 + r, vr(B + 16 + r, 2), vr(B + 24 + r, 2)))
        for r in range(0, 8, 2):
            a(pk("add", B + r, vr(B + r, 2), vr(B + 16 + r, 2)))
        for r in range(4):
            a("v_lshlrev_b32 %s, 16, %s" % (vr(B + 8 + 2 * r), vr(108 + 4 * q + r)))
            a("v_and_b32 %s, 0xffff0000, %s" % (vr(B + 9 + 2 * r), vr(108 + 4 * q + r)))
        for r in range(0, 8, 2):
            a(pk("add", B + r, vr(B + r, 2), vr(B + 8 + r, 2)))
        for r in range(4):
            a("v_cvt_pk_bf16_f32 %s, %s, %s" % (vr(B + 16 + r), vr(B + 2 * r), vr(B + 2 * r + 1)))
        a("buffer_store_dwordx4 %s, %s, s[32:35], 0 offen" % (vr(B + 16, 4), vr(104 + q)))
    a("s_waitcnt vmcnt(0)")
    dump_stamps(a, 6, 0x1210000)
    a.label("Lk2_exit")
    a("s_endpgm")


def kd(name, vgpr):
    return """.amdhsa_kernel %s
  .amdhsa_next_free_vgpr %d
  .amdhsa_next_free_sgpr 96
  .amdhsa_accum_offset %d
  .amdhsa_group_segment_fixed_size 0
  .amdhsa_kernarg_size 88
  .amdhsa_user_sgpr_count 2
  .amdhsa_user_sgpr_kernarg_segment_ptr 1
  .amdhsa_system_sgpr_workgroup_id_x 1
  .amdhsa_float_denorm_mode_32 3
.end_amdhsa_kernel
""" % (name, vgpr, (vgpr + 3) // 4 * 4)


def main():
    out = []
    out.append("; @launch kernel=k1_kernel grid=(256,1,1) block=(512,1,1) lds=%d" % K1_LDS)
    out.append("; @launch kernel=k2_kernel grid=(256,1,1) block=(256,1,1) lds=%d" % K2_LDS)
    out.append('.amdgcn_target "amdgcn-amd-amdhsa--gfx950"')
    out.append(".text")
    for nm, g in (("k1_kernel", gen_k1), ("k2_kernel", gen_k2)):
        a = Asm()
        g(a)
        out.append(".globl %s" % nm)
        out.append(".p2align 8")
        out.append(".type %s,@function" % nm)
        out.append(a.text())
    out.append('.section .rodata,"a"')
    for nm, v in (("k1_kernel", 256), ("k2_kernel", 256)):
        out.append(".p2align 6")
        out.append(kd(nm, v))
    path = os.environ.get("GENOUT", "cdna_kernels/%s.s" % NAME)
    open(path, "w").write("\n".join(out))
    print("wrote", path, sum(len(x) for x in out))


if __name__ == "__main__":
    main()
```
